```python
import torch

def _softmax(x, axis=-1):
    return torch.softmax(x, dim=axis)
def _gelu(x):
    return torch.nn.functional.gelu(x, approximate="tanh")
def _silu(x):
    return torch.nn.functional.silu(x)
def _sigmoid(x):
    return torch.sigmoid(x)
def _layernorm(x, axis=-1, eps=1e-5):
    m = x.mean(dim=axis, keepdim=True)
    v = x.var(dim=axis, keepdim=True, unbiased=False)
    return (x - m) / torch.sqrt(v + eps)
def _scatter_add(tgt, idx, src, axis=0):
    return tgt.clone().index_add_(axis, idx, src)
def _segment_sum(src, seg, n):
    out = torch.zeros((n,) + src.shape[1:], dtype=src.dtype)
    return out.index_add_(0, seg, src)
def _pad(x, pw):
    flat = tuple(v for pair in reversed(pw) for v in pair)
    return torch.nn.functional.pad(x, flat)

kernel_name = 'interleave_layers__sliding_block__glu_gated_bilinear__prompt'

def setup_inputs():

    _w = (lambda a: (lambda t: t.to(torch.bfloat16) if t.is_floating_point() else t)(torch.as_tensor(a)))
    def _A_setup():
        B, S, D = 1, 2048, 448
        return {
            "x": _w((lambda *s: torch.randn(*s, dtype=torch.bfloat16) * 0.05)(B, S, D)),
            "wqkv": _w((lambda *s: torch.randn(*s, dtype=torch.bfloat16) * 0.05)(D, 3 * D)),
            "wo": _w((lambda *s: torch.randn(*s, dtype=torch.bfloat16) * 0.05)(D, D)),
        }
    _A_in = _A_setup()

    def _B_setup():
        B, S, D, F = 1, 2048, 448, 1792
        return {
            "x": _w((lambda *s: torch.randn(*s, dtype=torch.bfloat16) * 0.05)(B, S, D)),
            "w_gate": _w((lambda *s: torch.randn(*s, dtype=torch.bfloat16) * 0.8)(D, F) * (D ** -0.5)),
            "w_up": _w((lambda *s: torch.randn(*s, dtype=torch.bfloat16) * 0.8)(D, F) * (D ** -0.5)),
            "w_down": _w((lambda *s: torch.randn(*s, dtype=torch.bfloat16) * 0.8)(F, D) * (F ** -0.5)),
        }
    _B_in = _B_setup()

    return {
        "A_x": _A_in["x"],
        "A_wqkv": _A_in["wqkv"],
        "A_wo": _A_in["wo"],
        "B_x": _B_in["x"],
        "B_w_gate": _B_in["w_gate"],
        "B_w_up": _B_in["w_up"],
        "B_w_down": _B_in["w_down"],
    }

def reference(A_x, A_wqkv, A_wo, B_x, B_w_gate, B_w_up, B_w_down):
    def _A_ref(x, wqkv, wo):
        B, S, D = x.shape
        H = 16; Dh = D // H; W = 256
        qkv = (lambda x, *d: x.permute(*d))((x @ wqkv).reshape(B, S, 3, H, Dh), 2, 0, 3, 1, 4)
        q, k, v = qkv[0], qkv[1], qkv[2]
        scores = torch.einsum("bhqd,bhkd->bhqk", q, k) * (Dh ** -0.5)
        idx = torch.arange(S)
        mask = (idx[:, None] - idx[None, :] >= 0) & (idx[:, None] - idx[None, :] < W)
        scores = torch.where(mask[None, None], scores, -1e9)
        p = _softmax(scores, axis=-1)
        o = torch.einsum("bhqk,bhkd->bhqd", p, v)
        return (lambda x, *d: x.permute(*d))(o, 0, 2, 1, 3).reshape(B, S, D) @ wo

    def _B_ref(x, w_gate, w_up, w_down):
        g = torch.einsum("bsd,df->bsf", x, w_gate)
        u = torch.einsum("bsd,df->bsf", x, w_up)
        h = g * u
        return torch.einsum("bsf,fd->bsd", h, w_down)

    x = A_x
    x = x + _A_ref(_layernorm(x, axis=-1), A_wqkv, A_wo)
    x = x + _B_ref(_layernorm(x, axis=-1), B_w_gate, B_w_up, B_w_down)
    x = x + _A_ref(_layernorm(x, axis=-1), A_wqkv, A_wo)
    x = x + _B_ref(_layernorm(x, axis=-1), B_w_gate, B_w_up, B_w_down)
    return x
```

```python
import sys

NAME = "interleave_layers__sliding_block__glu_gated_bilinear__prompt"

XF = 0x0
WQKVF = 0x200000
WOF = 0x380000
WGUF = 0x400000
WDF = 0x800000
CS = 0xA00000
CS_G = CS + 8192
CS_U = CS + 16384
QF = 0xC00000
KF = 0xE00000
VF = 0x1000000
OF = 0x1200000
HF = 0x1400000
WS_SIZE = 0x1B00000

OUT_BYTES = 2048 * 448 * 2


class Asm:
    def __init__(self):
        self.lines = []
        self.uid = 0

    def __call__(self, s):
        for l in s.strip("\n").split("\n"):
            self.lines.append("    " + l.strip())

    def label(self, l):
        self.lines.append(l + ":")

    def raw(self, s):
        self.lines.append(s)

    def newlabel(self, base):
        self.uid += 1
        return "L_%s_%d" % (base, self.uid)

    def text(self):
        return "\n".join(self.lines) + "\n"


def vr(b, n=4, k="v"):
    return "%s[%d:%d]" % (k, b, b + n - 1)


def ar(b, n=4):
    return vr(b, n, "a")


def kernel_begin(a, name):
    a.raw(".globl %s" % name)
    a.raw(".p2align 8")
    a.raw(".type %s,@function" % name)
    a.label(name)


KDS = []


def kernel_desc(name, vgpr, sgpr, accum):
    KDS.append(""".amdhsa_kernel %s
  .amdhsa_next_free_vgpr %d
  .amdhsa_next_free_sgpr %d
  .amdhsa_accum_offset %d
  .amdhsa_group_segment_fixed_size 0
  .amdhsa_kernarg_size 80
  .amdhsa_user_sgpr_count 2
  .amdhsa_user_sgpr_kernarg_segment_ptr 1
  .amdhsa_system_sgpr_workgroup_id_x 1
.end_amdhsa_kernel""" % (name, vgpr, sgpr, accum))


def ws_srd(a, s):
    a("s_load_dwordx2 s[%d:%d], s[0:1], 72" % (s, s + 1))
    a("s_mov_b32 s%d, 0x%x" % (s + 2, WS_SIZE))
    a("s_mov_b32 s%d, 0x20000" % (s + 3))


def reduce_g(a, x, t):
    a("v_mov_b32 v%d, v%d" % (t, x))
    a("s_nop 1")
    a("v_permlane16_swap_b32 v%d, v%d" % (x, t))
    a("v_add_f32 v%d, v%d, v%d" % (x, x, t))
    a("v_mov_b32 v%d, v%d" % (t, x))
    a("s_nop 1")
    a("v_permlane32_swap_b32 v%d, v%d" % (x, t))
    a("v_add_f32 v%d, v%d, v%d" % (x, x, t))


def max_g(a, x, t):
    a("v_mov_b32 v%d, v%d" % (t, x))
    a("s_nop 1")
    a("v_permlane16_swap_b32 v%d, v%d" % (x, t))
    a("v_max_f32 v%d, v%d, v%d" % (x, x, t))
    a("v_mov_b32 v%d, v%d" % (t, x))
    a("s_nop 1")
    a("v_permlane32_swap_b32 v%d, v%d" % (x, t))
    a("v_max_f32 v%d, v%d, v%d" % (x, x, t))


def ln_stats(a, s1, s2, t, sinv, seps):
    a("v_mul_f32 v%d, s%d, v%d" % (s1, sinv, s1))
    a("v_mul_f32 v%d, s%d, v%d" % (s2, sinv, s2))
    a("v_fma_f32 v%d, -v%d, v%d, v%d" % (s2, s1, s1, s2))
    a("v_max_f32 v%d, 0, v%d" % (s2, s2))
    a("v_cvt_pk_bf16_f32 v%d, v%d, v%d" % (t, s1, s2))
    a("v_lshlrev_b32 v%d, 16, v%d" % (s1, t))
    a("v_xor_b32 v%d, 0x80000000, v%d" % (s1, s1))
    a("v_and_b32 v%d, 0xffff0000, v%d" % (s2, t))
    a("v_add_f32 v%d, s%d, v%d" % (s2, seps, s2))
    a("v_cvt_pk_bf16_f32 v%d, v%d, v%d" % (s2, s2, s2))
    a("v_and_b32 v%d, 0xffff0000, v%d" % (s2, s2))
    a("v_sqrt_f32 v%d, v%d" % (s2, s2))
    a("s_nop 0")
    a("v_cvt_pk_bf16_f32 v%d, v%d, v%d" % (s2, s2, s2))
    a("v_and_b32 v%d, 0xffff0000, v%d" % (s2, s2))
    a("v_rcp_f32 v%d, v%d" % (s2, s2))
    a("s_nop 0")


INV448 = "0x3b124925"
EPS = "0x3727c5ac"
ONES_BF = "0x3f803f80"


def gen_prep(a):
    name = "prep_kernel"
    kernel_begin(a, name)
    a("s_cmp_ge_u32 s2, 588")
    a("s_cbranch_scc1 L_prep_end")
    a("s_load_dwordx16 s[8:23], s[0:1], 0")
    a("s_load_dwordx2 s[28:29], s[0:1], 72")
    a("v_lshrrev_b32 v1, 6, v0")
    a("v_and_b32 v2, 63, v0")
    a("v_and_b32 v3, 15, v0")
    a("v_bfe_u32 v4, v0, 4, 2")
    a("v_readfirstlane_b32 s3, v1")
    a("v_lshlrev_b32 v5, 4, v2")
    a("s_mov_b32 s30, 0x%x" % WS_SIZE)
    a("s_mov_b32 s31, 0x20000")
    a("s_mov_b32 s7, 0x20000")
    a("s_waitcnt lgkmcnt(0)")
    a("s_cmp_ge_u32 s2, 460")
    a("s_cbranch_scc1 L_prep_x")
    a("s_cmp_ge_u32 s2, 432")
    a("s_cbranch_scc1 L_prep_wo")
    a("s_cmp_ge_u32 s2, 320")
    a("s_cbranch_scc1 L_prep_wd")
    a("s_cmp_ge_u32 s2, 96")
    a("s_cbranch_scc1 L_prep_gu")
    a("s_mul_i32 s40, s2, 43")
    a("s_lshr_b32 s40, s40, 8")
    a("s_mul_i32 s41, s40, 6")
    a("s_sub_u32 s41, s2, s41")
    a("s_mov_b32 s4, s10")
    a("s_mov_b32 s5, s11")
    a("s_mov_b32 s6, %d" % (448 * 1344 * 2))
    a("s_mov_b32 s32, 2688")
    a("s_mov_b32 s33, %d" % (32 * 2688))
    a("s_mul_i32 s34, s40, %d" % (14 * 6 * 1024))
    a("s_lshl_b32 s42, s41, 10")
    a("s_add_u32 s34, s34, s42")
    a("s_add_u32 s34, s34, 0x%x" % WQKVF)
    a("s_mov_b32 s35, %d" % (6 * 1024))
    a("s_mov_b32 s36, 14")
    a("s_lshl_b32 s37, s2, 6")
    a("s_add_u32 s37, s37, 0x%x" % CS)
    a("s_mov_b32 s38, 0")
    a("s_lshr_b32 s42, s41, 1")
    a("s_mul_i32 s42, s42, 448")
    a("s_mul_i32 s43, s40, 28")
    a("s_add_u32 s42, s42, s43")
    a("s_and_b32 s43, s41, 1")
    a("s_lshl_b32 s43, s43, 4")
    a("v_add_u32 v6, s43, v3")
    a("v_add_u32 v7, s42, v6")
    a("v_lshlrev_b32 v7, 1, v7")
    a("v_mul_u32_u24 v8, 4, v4")
    a("v_mul_u32_u24 v8, 2688, v8")
    a("v_add_u32 v7, v7, v8")
    a("v_add_u32 v9, %d, v7" % (16 * 2688))
    a("v_cmp_gt_u32 vcc, 28, v6")
    a("v_mov_b32 v10, 0x40000000")
    a("s_nop 1")
    a("v_cndmask_b32 v7, v10, v7, vcc")
    a("v_cndmask_b32 v9, v10, v9, vcc")
    a("s_branch L_prep_gather")
    a.label("L_prep_gu")
    a("s_sub_u32 s40, s2, 96")
    a("s_cmp_ge_u32 s40, 112")
    a("s_cselect_b32 s41, 1, 0")
    a("s_cselect_b32 s4, s18, s16")
    a("s_cselect_b32 s5, s19, s17")
    a("s_mul_i32 s42, s41, 112")
    a("s_sub_u32 s40, s40, s42")
    a("s_mov_b32 s6, %d" % (448 * 1792 * 2))
    a("s_mov_b32 s32, 3584")
    a("s_mov_b32 s33, %d" % (32 * 3584))
    a("s_lshr_b32 s42, s40, 1")
    a("s_mul_i32 s34, s42, %d" % (14 * 4 * 1024))
    a("s_lshl_b32 s42, s41, 1")
    a("s_and_b32 s43, s40, 1")
    a("s_add_u32 s42, s42, s43")
    a("s_lshl_b32 s42, s42, 10")
    a("s_add_u32 s34, s34, s42")
    a("s_add_u32 s34, s34, 0x%x" % WGUF)
    a("s_mov_b32 s35, 4096")
    a("s_mov_b32 s36, 14")
    a("s_lshl_b32 s37, s40, 6")
    a("s_lshl_b32 s42, s41, 13")
    a("s_add_u32 s37, s37, s42")
    a("s_add_u32 s37, s37, 0x%x" % CS_G)
    a("s_mov_b32 s38, 0")
    a("s_lshl_b32 s42, s40, 4")
    a("v_add_u32 v7, s42, v3")
    a("v_lshlrev_b32 v7, 1, v7")
    a("v_mul_u32_u24 v8, %d, v4" % (4 * 3584))
    a("v_add_u32 v7, v7, v8")
    a("v_add_u32 v9, %d, v7" % (16 * 3584))
    a("s_branch L_prep_gather")
    a.label("L_prep_wd")
    a("s_sub_u32 s40, s2, 320")
    a("s_and_b32 s41, s40, 3")
    a("s_lshr_b32 s40, s40, 2")
    a("s_mov_b32 s4, s20")
    a("s_mov_b32 s5, s21")
    a("s_mov_b32 s6, %d" % (1792 * 448 * 2))
    a("s_mov_b32 s32, 896")
    a("s_mov_b32 s33, %d" % (32 * 896))
    a("s_mul_i32 s34, s40, %d" % (56 * 1024))
    a("s_mul_i32 s42, s41, %d" % (14 * 1024))
    a("s_add_u32 s34, s34, s42")
    a("s_add_u32 s34, s34, 0x%x" % WDF)
    a("s_mov_b32 s35, 1024")
    a("s_mov_b32 s36, 14")
    a("s_mov_b32 s37, -1")
    a("s_mul_i32 s38, s41, %d" % (14 * 32 * 896))
    a("s_lshl_b32 s42, s40, 4")
    a("v_add_u32 v7, s42, v3")
    a("v_lshlrev_b32 v7, 1, v7")
    a("v_mul_u32_u24 v8, %d, v4" % (4 * 896))
    a("v_add_u32 v7, v7, v8")
    a("v_add_u32 v9, %d, v7" % (16 * 896))
    a("s_branch L_prep_gather")
    a.label("L_prep_wo")
    a("s_sub_u32 s40, s2, 432")
    a("s_mov_b32 s4, s12")
    a("s_mov_b32 s5, s13")
    a("s_mov_b32 s6, %d" % (448 * 448 * 2))
    a("s_mov_b32 s32, 896")
    a("s_mov_b32 s33, %d" % (28 * 896))
    a("s_lshl_b32 s34, s40, 14")
    a("s_add_u32 s34, s34, 0x%x" % WOF)
    a("s_mov_b32 s35, 1024")
    a("s_mov_b32 s36, 16")
    a("s_mov_b32 s37, -1")
    a("s_mov_b32 s38, 0")
    a("s_lshl_b32 s42, s40, 4")
    a("v_add_u32 v7, s42, v3")
    a("v_lshlrev_b32 v7, 1, v7")
    a("v_mul_u32_u24 v8, %d, v4" % (4 * 896))
    a("v_add_u32 v7, v7, v8")
    a("v_add_u32 v9, %d, v7" % (16 * 896))
    a("v_cmp_gt_u32 vcc, 3, v4")
    a("v_mov_b32 v10, 0x40000000")
    a("s_nop 1")
    a("v_cndmask_b32 v9, v10, v9, vcc")
    a("s_branch L_prep_gather")
    a.label("L_prep_gather")
    a("v_mov_b32 v60, 0")
    for q in range(4):
        lskip = a.newlabel("prep_skipld")
        a("s_add_u32 s44, s3, %d" % (4 * q))
        a("s_cmp_ge_u32 s44, s36")
        a("s_cbranch_scc1 %s" % lskip)
        a("s_mul_i32 s45, s44, s33")
        a("s_add_u32 s45, s45, s38")
        a("s_add_u32 s46, s45, s32")
        a("s_add_u32 s47, s46, s32")
        a("s_add_u32 s48, s47, s32")
        b = 16 + q * 8
        for j in range(4):
            a("buffer_load_ushort v%d, v7, s[4:7], s%d offen" % (b + j, 45 + j))
        for j in range(4):
            a("buffer_load_ushort v%d, v9, s[4:7], s%d offen" % (b + 4 + j, 45 + j))
        a.label(lskip)
    a("s_waitcnt vmcnt(0)")
    for q in range(4):
        lskip = a.newlabel("prep_skipst")
        a("s_add_u32 s44, s3, %d" % (4 * q))
        a("s_cmp_ge_u32 s44, s36")
        a("s_cbranch_scc1 %s" % lskip)
        b = 16 + q * 8
        d = 48 + q * 4
        d = 64 + q * 4
        for j in range(4):
            a("v_lshl_or_b32 v%d, v%d, 16, v%d" % (d + j, b + 2 * j + 1, b + 2 * j))
        for j in range(8):
            a("v_lshlrev_b32 v%d, 16, v%d" % (b + j, b + j))
        for j in range(8):
            a("v_add_f32 v60, v60, v%d" % (b + j))
        a("s_mul_i32 s45, s44, s35")
        a("s_add_u32 s45, s45, s34")
        a("buffer_store_dwordx4 %s, v5, s[28:31], s45 offen" % vr(d))
        a.label(lskip)
    a("s_cmp_eq_u32 s37, -1")
    a("s_cbranch_scc1 L_prep_end")
    reduce_g(a, 60, 61)
    a("s_lshl_b32 s44, s3, 6")
    a("v_lshlrev_b32 v62, 2, v3")
    a("v_add_u32 v63, s44, v62")
    a("ds_write_b32 v63, v60")
    a("s_waitcnt lgkmcnt(0)")
    a("s_barrier")
    a("s_cmp_lg_u32 s3, 0")
    a("s_cbranch_scc1 L_prep_end")
    a("ds_read_b32 v16, v62")
    a("ds_read_b32 v17, v62 offset:64")
    a("ds_read_b32 v18, v62 offset:128")
    a("ds_read_b32 v19, v62 offset:192")
    a("s_waitcnt lgkmcnt(0)")
    a("v_add_f32 v16, v16, v17")
    a("v_add_f32 v18, v18, v19")
    a("v_add_f32 v16, v16, v18")
    a("buffer_store_dword v16, v62, s[28:31], s37 offen")
    a("s_branch L_prep_end")
    a.label("L_prep_x")
    a("s_sub_u32 s40, s2, 460")
    a("s_mov_b32 s4, s8")
    a("s_mov_b32 s5, s9")
    a("s_mov_b32 s6, %d" % OUT_BYTES)
    a("s_lshl_b32 s42, s40, 4")
    a("v_add_u32 v7, s42, v3")
    a("v_mul_u32_u24 v7, 896, v7")
    a("v_lshlrev_b32 v8, 3, v4")
    a("v_add_u32 v7, v7, v8")
    a("s_mul_i32 s34, s40, %d" % (14 * 1024))
    a("s_add_u32 s34, s34, 0x%x" % XF)
    for q in range(4):
        lskip = a.newlabel("prep_xld")
        a("s_add_u32 s44, s3, %d" % (4 * q))
        a("s_cmp_ge_u32 s44, 14")
        a("s_cbranch_scc1 %s" % lskip)
        a("s_lshl_b32 s45, s44, 6")
        b = 16 + q * 4
        a("buffer_load_dwordx2 %s, v7, s[4:7], s45 offen" % vr(b, 2))
        a("buffer_load_dwordx2 %s, v7, s[4:7], s45 offen offset:32" % vr(b + 2, 2))
        a.label(lskip)
    a("s_waitcnt vmcnt(0)")
    for q in range(4):
        lskip = a.newlabel("prep_xst")
        a("s_add_u32 s44, s3, %d" % (4 * q))
        a("s_cmp_ge_u32 s44, 14")
        a("s_cbranch_scc1 %s" % lskip)
        a("s_lshl_b32 s45, s44, 10")
        a("s_add_u32 s45, s45, s34")
        b = 16 + q * 4
        a("buffer_store_dwordx4 %s, v5, s[28:31], s45 offen" % vr(b))
        a.label(lskip)
    a.label("L_prep_end")
    a("s_endpgm")
    kernel_desc(name, 80, 56, 80)


def gen_qkv(a):
    name = "qkv_kernel"
    kernel_begin(a, name)
    a("s_cmp_ge_u32 s2, 256")
    a("s_cbranch_scc1 L_qkv_end")
    ws_srd(a, 4)
    a("v_lshrrev_b32 v1, 6, v0")
    a("v_and_b32 v2, 63, v0")
    a("v_and_b32 v3, 15, v0")
    a("v_bfe_u32 v4, v0, 4, 2")
    a("v_readfirstlane_b32 s3, v1")
    a("v_lshlrev_b32 v5, 4, v2")
    a("s_and_b32 s8, s2, 7")
    a("s_lshr_b32 s9, s2, 3")
    a("s_lshr_b32 s10, s8, 1")
    a("s_lshl_b32 s10, s10, 2")
    a("s_lshr_b32 s11, s9, 3")
    a("s_add_u32 s10, s10, s11")
    a("s_and_b32 s11, s8, 1")
    a("s_lshl_b32 s11, s11, 3")
    a("s_and_b32 s12, s9, 7")
    a("s_add_u32 s11, s11, s12")
    a("s_lshl_b32 s12, s10, 3")
    a("s_lshl_b32 s13, s3, 1")
    a("s_add_u32 s12, s12, s13")
    a("s_mul_i32 s14, s12, %d" % (14 * 1024))
    a("s_add_u32 s15, s14, %d" % (14 * 1024))
    a("s_mul_i32 s16, s11, %d" % (84 * 1024))
    a("s_add_u32 s16, s16, 0x%x" % WQKVF)
    a("s_mul_i32 s17, s3, %d" % (21 * 1024))
    a("s_add_u32 s16, s16, s17")
    a("s_mov_b32 s20, %s" % ONES_BF)
    a("s_mov_b32 s21, %s" % INV448)
    a("s_mov_b32 s22, %s" % EPS)
    a("s_waitcnt lgkmcnt(0)")
    for c in range(0, 21, 4):
        a("s_add_u32 s18, s17, %d" % (c * 1024))
        a("s_mov_b32 m0, s18")
        a("s_add_u32 s19, s16, %d" % (c * 1024))
        for j in range(min(4, 21 - c)):
            a("buffer_load_dwordx4 v5, s[4:7], s19 offen offset:%d lds" % (j * 1024))
    AB = 16
    for ks in range(14):
        for m in range(2):
            a("buffer_load_dwordx4 %s, v5, s[4:7], s%d offen offset:%d" % (vr(AB + (m * 14 + ks) * 4), 14 + m if ks < 4 else 23 + m, (ks % 4) * 1024))
        if ks % 4 == 3:
            a("s_add_u32 s23, s14, %d" % ((ks + 1) * 1024))
            a("s_add_u32 s24, s15, %d" % ((ks + 1) * 1024))
    CSB = 228
    a("s_mul_i32 s25, s11, 384")
    a("s_add_u32 s25, s25, 0x%x" % CS)
    a("v_lshlrev_b32 v6, 4, v4")
    a("v_lshlrev_b32 v7, 2, v3")
    for nt in range(4):
        a("buffer_load_dwordx4 %s, v6, s[4:7], s25 offen offset:%d" % (vr(CSB + nt * 4), nt * 64))
    for nt in range(4, 6):
        a("buffer_load_dword v%d, v7, s[4:7], s25 offen offset:%d" % (CSB + 16 + nt - 4, nt * 64))
    ST = 224
    for k in range(4):
        a("v_mov_b32 v%d, 0" % (ST + k))
    a("s_waitcnt vmcnt(0)")
    a("s_barrier")
    ACC = 128
    BB = 176

    def ldb(ks):
        for nt in range(6):
            a("ds_read_b128 %s, v%d offset:%d" % (vr(BB + (ks & 1) * 24 + nt * 4), 5 if ks < 10 else 8, ((ks * 6 + nt) * 1024) - (0 if ks < 10 else 61440)))
    a("v_add_u32 v8, 61440, v5")
    ldb(0)
    for ks in range(14):
        if ks + 1 < 14:
            ldb(ks + 1)
            a("s_waitcnt lgkmcnt(6)")
        else:
            a("s_waitcnt lgkmcnt(0)")
        for m in range(2):
            af = AB + (m * 14 + ks) * 4
            for nt in range(6):
                bf = BB + (ks & 1) * 24 + nt * 4
                acc = ACC + (m * 6 + nt) * 4
                c = "0" if ks == 0 else vr(acc)
                if nt < 4:
                    a("v_mfma_f32_16x16x32_bf16 %s, %s, %s, %s" % (vr(acc), vr(bf), vr(af), c))
                else:
                    a("v_mfma_f32_16x16x32_bf16 %s, %s, %s, %s" % (vr(acc), vr(af), vr(bf), c))
            for k in range(4):
                a("v_dot2c_f32_bf16 v%d, s20, v%d" % (ST + m, af + k))
                a("v_dot2c_f32_bf16 v%d, v%d, v%d" % (ST + 2 + m, af + k, af + k))
    a("s_nop 3")
    for k in range(4):
        reduce_g(a, ST + k, 9)
    for m in range(2):
        ln_stats(a, ST + m, ST + 2 + m, 9, 21, 22)
    a("v_lshlrev_b32 v10, 4, v4")
    for r in range(4):
        a("v_add_u32 v%d, %d, v10" % (11 + r, 4 * r))
    for m in range(2):
        for r in range(4):
            a("ds_bpermute_b32 v%d, v%d, v%d" % (16 + m * 4 + r, 11 + r, ST + m))
            a("ds_bpermute_b32 v%d, v%d, v%d" % (24 + m * 4 + r, 11 + r, ST + 2 + m))
    a("s_lshl_b32 s26, s11, 17")
    a("s_lshl_b32 s27, s12, 10")
    a("s_add_u32 s26, s26, s27")
    a("s_add_u32 s27, s26, 0x%x" % KF)
    a("s_add_u32 s26, s26, 0x%x" % QF)
    for m in range(2):
        for qk in range(2):
            for p in range(2):
                nt = qk * 2 + p
                acc = ACC + (m * 6 + nt) * 4
                for r in range(4):
                    a("v_fma_f32 v%d, v%d, v%d, v%d" % (acc + r, ST + m, CSB + nt * 4 + r, acc + r))
                    a("v_mul_f32 v%d, v%d, v%d" % (acc + r, ST + 2 + m, acc + r))
            d = 32 + (m * 2 + qk) * 4
            for p in range(2):
                acc = ACC + (m * 6 + qk * 2 + p) * 4
                a("v_cvt_pk_bf16_f32 v%d, v%d, v%d" % (d + 2 * p, acc, acc + 1))
                a("v_cvt_pk_bf16_f32 v%d, v%d, v%d" % (d + 2 * p + 1, acc + 2, acc + 3))
            a("buffer_store_dwordx4 %s, v5, s[4:7], s%d offen offset:%d" % (vr(d), 26 + qk, m * 1024))
    a("s_waitcnt lgkmcnt(0)")
    a("v_cmp_eq_u32 vcc, 12, v3")
    a("s_lshl_b32 s26, s11, 17")
    a("s_lshl_b32 s27, s12, 10")
    a("s_add_u32 s26, s26, s27")
    a("s_add_u32 s26, s26, 0x%x" % VF)
    for dt in range(2):
        nt = 4 + dt
        for m in range(2):
            acc = ACC + (m * 6 + nt) * 4
            for r in range(4):
                a("v_fma_f32 v%d, v%d, v%d, v%d" % (acc + r, 16 + m * 4 + r, CSB + 16 + dt, acc + r))
                a("v_mul_f32 v%d, v%d, v%d" % (acc + r, 24 + m * 4 + r, acc + r))
                if dt == 1:
                    a("v_cndmask_b32 v%d, v%d, 1.0, vcc" % (acc + r, acc + r))
        d = 48 + dt * 4
        for m in range(2):
            acc = ACC + (m * 6 + nt) * 4
            a("v_cvt_pk_bf16_f32 v%d, v%d, v%d" % (d + 2 * m, acc, acc + 1))
            a("v_cvt_pk_bf16_f32 v%d, v%d, v%d" % (d + 2 * m + 1, acc + 2, acc + 3))
        a("buffer_store_dwordx4 %s, v5, s[4:7], s26 offen offset:%d" % (vr(d), dt * 1024))
    a.label("L_qkv_end")
    a("s_endpgm")
    kernel_desc(name, 256, 40, 256)


def gen_attn(a):
    name = "attn_kernel"
    kernel_begin(a, name)
    a("s_cmp_ge_u32 s2, 256")
    a("s_cbranch_scc1 L_attn_end")
    ws_srd(a, 4)
    a("v_lshrrev_b32 v1, 6, v0")
    a("v_and_b32 v2, 63, v0")
    a("v_and_b32 v3, 15, v0")
    a("v_bfe_u32 v4, v0, 4, 2")
    a("v_readfirstlane_b32 s3, v1")
    a("v_lshlrev_b32 v5, 4, v2")
    a("s_and_b32 s8, s2, 7")
    a("s_lshr_b32 s9, s2, 3")
    a("s_lshl_b32 s10, s8, 1")
    a("s_lshr_b32 s11, s9, 4")
    a("s_add_u32 s10, s10, s11")
    a("s_and_b32 s11, s9, 15")
    a("s_lshl_b32 s11, s11, 2")
    a("s_add_u32 s11, s11, s3")
    a("s_lshl_b32 s12, s10, 17")
    a("s_lshl_b32 s13, s11, 11")
    a("s_add_u32 s12, s12, s13")
    a("s_add_u32 s14, s12, 0x%x" % QF)
    a("s_add_u32 s15, s12, 0x%x" % (KF - 16 * 1024))
    a("s_add_u32 s16, s12, 0x%x" % (VF - 16 * 1024))
    a("s_waitcnt lgkmcnt(0)")
    QB = 8
    for t in range(2):
        a("buffer_load_dwordx4 %s, v5, s[4:7], s14 offen offset:%d" % (vr(QB + 4 * t), t * 1024))
    for kt in range(18):
        a("buffer_load_dwordx4 %s, v5, s[4:7], s15 offen offset:%d" % (ar(kt * 4), (kt % 4) * 1024))
        if kt % 4 == 3:
            a("s_add_u32 s15, s15, 4096")
    for b in range(18):
        a("buffer_load_dwordx4 %s, v5, s[4:7], s16 offen offset:%d" % (ar(72 + b * 4), (b % 4) * 1024))
        if b % 4 == 3:
            a("s_add_u32 s16, s16, 4096")
    a("v_lshlrev_b32 v6, 2, v4")
    for r in range(4):
        a("v_add_u32 v7, %d, v6" % r)
        a("v_cmp_ge_u32 s[%d:%d], v3, v7" % (20 + 2 * r, 21 + 2 * r))
    a("v_mov_b32 v6, 0xff800000")
    a("s_mov_b32 s28, 0x3e8b9a6b")
    SB = 16

    def S(t, kt):
        return SB + (t * 18 + kt) * 4
    for kt in range(18):
        a("s_waitcnt vmcnt(%d)" % (18 + 17 - kt))
        for t in range(2):
            if (t == 0 and kt == 17) or (t == 1 and kt == 0):
                continue
            a("v_mfma_f32_16x16x32_bf16 %s, %s, %s, 0" % (vr(S(t, kt)), ar(kt * 4), vr(QB + 4 * t)))
    a("s_nop 7")
    a("s_lshl_b32 s17, s11, 1")
    a("s_sub_i32 s17, 16, s17")
    a("s_cmp_le_i32 s17, 0")
    a("s_cbranch_scc1 L_attn_noneg")
    for kt in range(16):
        l = a.newlabel("attn_neg")
        a("s_cmp_le_i32 s17, %d" % kt)
        a("s_cbranch_scc1 %s" % l)
        for t in range(2):
            if (t == 1 and kt == 0):
                continue
            for r in range(4):
                a("v_mov_b32 v%d, v6" % (S(t, kt) + r))
        a.label(l)
    a.label("L_attn_noneg")
    for t in range(2):
        for r in range(4):
            a("v_cndmask_b32 v%d, v%d, v6, s[%d:%d]" % (S(t, t) + r, S(t, t) + r, 20 + 2 * r, 21 + 2 * r))
            a("v_cndmask_b32 v%d, v6, v%d, s[%d:%d]" % (S(t, t + 16) + r, S(t, t + 16) + r, 20 + 2 * r, 21 + 2 * r))
    MX = 176
    for t in range(2):
        regs = [S(t, kt) + r for kt in range(t, t + 17) for r in range(4)]
        a("v_max_f32 v%d, v%d, v%d" % (MX + t, regs[0], regs[1]))
        for k in range(2, len(regs), 2):
            a("v_max3_f32 v%d, v%d, v%d, v%d" % (MX + t, MX + t, regs[k], regs[k + 1]))
    for t in range(2):
        max_g(a, MX + t, 178)
    import struct, math
    c = (28 ** -0.5) * math.log2(math.e)
    chex = struct.unpack("<I", struct.pack("<f", c))[0]
    a("s_mov_b32 s28, 0x%08x" % chex)
    for t in range(2):
        a("v_mul_f32 v%d, s28, v%d" % (MX + t, MX + t))
    for t in range(2):
        for kt in range(t, t + 17):
            for r in range(4):
                a("v_fma_f32 v%d, v%d, s28, -v%d" % (S(t, kt) + r, S(t, kt) + r, MX + t))
            for r in range(4):
                a("v_exp_f32 v%d, v%d" % (S(t, kt) + r, S(t, kt) + r))
    a("s_nop 0")
    for t in range(2):
        for s in range(9):
            d = S(t, 2 * s)
            s0 = S(t, 2 * s)
            s1 = S(t, 2 * s + 1)
            if t == 1 and s == 0:
                a("v_cvt_pk_bf16_f32 v%d, v%d, v%d" % (d + 2, s1, s1 + 1))
                a("v_cvt_pk_bf16_f32 v%d, v%d, v%d" % (d + 3, s1 + 2, s1 + 3))
                a("v_mov_b32 v%d, 0" % d)
                a("v_mov_b32 v%d, 0" % (d + 1))
            elif t == 0 and s == 8:
                a("v_cvt_pk_bf16_f32 v%d, v%d, v%d" % (d, s0, s0 + 1))
                a("v_cvt_pk_bf16_f32 v%d, v%d, v%d" % (d + 1, s0 + 2, s0 + 3))
                a("v_mov_b32 v%d, 0" % (d + 2))
                a("v_mov_b32 v%d, 0" % (d + 3))
            else:
                a("v_cvt_pk_bf16_f32 v%d, v%d, v%d" % (d, s0, s0 + 1))
                a("v_cvt_pk_bf16_f32 v%d, v%d, v%d" % (d + 1, s0 + 2, s0 + 3))
                a("v_cvt_pk_bf16_f32 v%d, v%d, v%d" % (d + 2, s1, s1 + 1))
                a("v_cvt_pk_bf16_f32 v%d, v%d, v%d" % (d + 3, s1 + 2, s1 + 3))
    a("s_waitcnt vmcnt(0)")
    a("s_nop 1")
    OB = 160
    for s in range(9):
        for t in range(2):
            for dt in range(2):
                o = OB + (t * 2 + dt) * 4
                a("v_mfma_f32_16x16x32_bf16 %s, %s, %s, %s" % (vr(o), ar(72 + (s * 2 + dt) * 4), vr(S(t, 2 * s)), "0" if s == 0 else vr(o)))
    a("v_add_u32 v7, 48, v3")
    a("v_lshlrev_b32 v7, 2, v7")
    a("s_nop 7")
    for t in range(2):
        a("ds_bpermute_b32 v%d, v7, v%d" % (MX + t, OB + (t * 2 + 1) * 4))
    a("s_waitcnt lgkmcnt(0)")
    for t in range(2):
        a("v_rcp_f32 v%d, v%d" % (MX + t, MX + t))
    a("s_nop 0")
    a("s_lshl_b32 s12, s11, 15")
    a("s_lshl_b32 s13, s10, 10")
    a("s_add_u32 s12, s12, s13")
    a("s_add_u32 s12, s12, 0x%x" % OF)
    a("s_add_u32 s13, s12, 16384")
    for t in range(2):
        for dt in range(2):
            o = OB + (t * 2 + dt) * 4
            for r in range(4):
                a("v_mul_f32 v%d, v%d, v%d" % (o + r, MX + t, o + r))
        d = 180 + t * 4
        for dt in range(2):
            o = OB + (t * 2 + dt) * 4
            a("v_cvt_pk_bf16_f32 v%d, v%d, v%d" % (d + 2 * dt, o, o + 1))
            a("v_cvt_pk_bf16_f32 v%d, v%d, v%d" % (d + 2 * dt + 1, o + 2, o + 3))
        a("buffer_store_dwordx4 %s, v5, s[4:7], s%d offen" % (vr(d), 12 + t))
    a.label("L_attn_end")
    a("s_endpgm")
    kernel_desc(name, 192 + 144, 40, 192)


def gen_gemm_res(a, name, KS, AOFF, WOFF, final):
    kernel_begin(a, name)
    end = "L_%s_end" % name
    a("s_cmp_ge_u32 s2, 224")
    a("s_cbranch_scc1 %s" % end)
    ws_srd(a, 4)
    if final:
        a("s_load_dwordx2 s[32:33], s[0:1], 56")
        a("s_mov_b32 s34, %d" % OUT_BYTES)
        a("s_mov_b32 s35, 0x20000")
    a("v_lshrrev_b32 v1, 6, v0")
    a("v_and_b32 v2, 63, v0")
    a("v_and_b32 v3, 15, v0")
    a("v_bfe_u32 v4, v0, 4, 2")
    a("v_readfirstlane_b32 s3, v1")
    a("v_lshlrev_b32 v5, 4, v2")
    a("s_and_b32 s8, s2, 7")
    a("s_lshr_b32 s9, s2, 3")
    a("s_mul_i32 s10, s9, 37")
    a("s_lshr_b32 s10, s10, 8")
    a("s_mul_i32 s11, s10, 7")
    a("s_sub_u32 s11, s9, s11")
    a("s_lshl_b32 s8, s8, 2")
    a("s_add_u32 s10, s10, s8")
    KW = KS // 4
    a("s_mul_i32 s12, s10, %d" % (4 * KS * 1024))
    a("s_mul_i32 s13, s3, %d" % (KW * 1024))
    a("s_add_u32 s12, s12, s13")
    a("s_add_u32 s12, s12, 0x%x" % AOFF)
    for m in range(1, 4):
        a("s_add_u32 s%d, s12, %d" % (12 + m, m * KS * 1024))
    a("s_mul_i32 s16, s11, %d" % (4 * KS * 1024))
    a("s_mul_i32 s20, s3, %d" % (KW * 1024))
    a("s_add_u32 s16, s16, s20")
    a("s_add_u32 s16, s16, 0x%x" % WOFF)
    for n in range(1, 4):
        a("s_add_u32 s%d, s16, %d" % (16 + n, n * KS * 1024))
    a("s_lshl_b32 s20, s10, 2")
    a("s_add_u32 s20, s20, s3")
    a("s_mul_i32 s21, s20, %d" % (14 * 1024))
    a("s_lshl_b32 s22, s11, 11")
    a("s_add_u32 s21, s21, s22")
    a("s_add_u32 s21, s21, 0x%x" % XF)
    a("s_waitcnt lgkmcnt(0)")
    RX = 8
    a("buffer_load_dwordx4 %s, v5, s[4:7], s21 offen" % vr(RX))
    a("buffer_load_dwordx4 %s, v5, s[4:7], s21 offen offset:1024" % vr(RX + 4))
    DEPTH = min(KW, 6)
    ACC = 16

    def slot(ks):
        return (ks % DEPTH) * 32

    def issue(ks):
        for m in range(4):
            a("buffer_load_dwordx4 %s, v5, s[4:7], s%d offen offset:%d" % (ar(slot(ks) + m * 4), 12 + m, (ks % 4) * 1024))
        for n in range(4):
            a("buffer_load_dwordx4 %s, v5, s[4:7], s%d offen offset:%d" % (ar(slot(ks) + 16 + n * 4), 16 + n, (ks % 4) * 1024))
        if ks % 4 == 3:
            for k in range(8):
                a("s_add_u32 s%d, s%d, 4096" % (12 + k, 12 + k))
    for ks in range(DEPTH):
        issue(ks)
    for ks in range(KW):
        outstanding_after = min(KW - 1, ks + DEPTH - 1) - ks
        a("s_waitcnt vmcnt(%d)" % (outstanding_after * 8))
        for m in range(4):
            for n in range(4):
                acc = ACC + (m * 4 + n) * 4
                a("v_mfma_f32_16x16x32_bf16 %s, %s, %s, %s" % (vr(acc), ar(slot(ks) + 16 + n * 4), ar(slot(ks) + m * 4), "0" if ks == 0 else vr(acc)))
        if ks + DEPTH < KW:
            issue(ks + DEPTH)
    a("s_nop 7")
    a("s_lshl_b32 s22, s3, 14")
    a("v_add_u32 v6, s22, v5")
    for m in range(4):
        for n in range(4):
            a("ds_write_b128 v6, %s offset:%d" % (vr(ACC + (m * 4 + n) * 4), (m * 4 + n) * 1024))
    a("s_waitcnt lgkmcnt(0)")
    a("s_barrier")
    a("s_lshl_b32 s22, s3, 12")
    a("v_add_u32 v6, s22, v5")
    RB = 80
    for w in range(4):
        for n in range(4):
            a("ds_read_b128 %s, v6 offset:%d" % (vr(RB + (w * 4 + n) * 4), w * 16384 + n * 1024))
    a("s_waitcnt lgkmcnt(0)")
    for n in range(4):
        for r in range(4):
            x = RB + n * 4 + r
            a("v_add_f32 v%d, v%d, v%d" % (x, x, x + 16))
            a("v_add_f32 v%d, v%d, v%d" % (x + 32, x + 32, x + 48))
            a("v_add_f32 v%d, v%d, v%d" % (x, x, x + 32))
    T = 16
    for p in range(2):
        for q in range(4):
            x = RB + (2 * p + (q >> 1)) * 4 + (q & 1) * 2
            a("v_cvt_pk_bf16_f32 v%d, v%d, v%d" % (T, x, x + 1))
            a("v_lshlrev_b32 v%d, 16, v%d" % (T + 1, T))
            a("v_and_b32 v%d, 0xffff0000, v%d" % (T + 2, T))
            a("v_lshlrev_b32 v%d, 16, v%d" % (T + 3, RX + p * 4 + q))
            a("v_and_b32 v%d, 0xffff0000, v%d" % (T + 4, RX + p * 4 + q))
            a("v_add_f32 v%d, v%d, v%d" % (T + 1, T + 1, T + 3))
            a("v_add_f32 v%d, v%d, v%d" % (T + 2, T + 2, T + 4))
            a("v_cvt_pk_bf16_f32 v%d, v%d, v%d" % (24 + p * 4 + q, T + 1, T + 2))
    if not final:
        a("buffer_store_dwordx4 %s, v5, s[4:7], s21 offen" % vr(24))
        a("buffer_store_dwordx4 %s, v5, s[4:7], s21 offen offset:1024" % vr(28))
    else:
        a("s_lshl_b32 s22, s20, 4")
        a("v_add_u32 v6, s22, v3")
        a("v_mul_u32_u24 v6, 896, v6")
        a("v_lshlrev_b32 v7, 3, v4")
        a("v_add_u32 v6, v6, v7")
        a("s_lshl_b32 s22, s11, 7")
        for p in range(2):
            a("buffer_store_dwordx2 %s, v6, s[32:35], s22 offen offset:%d" % (vr(24 + p * 4, 2), p * 64))
            a("buffer_store_dwordx2 %s, v6, s[32:35], s22 offen offset:%d" % (vr(26 + p * 4, 2), p * 64 + 32))
    a.label(end)
    a("s_endpgm")
    kernel_desc(name, 144 + DEPTH * 32, 40, 144)


def gen_gateup(a):
    name = "gateup_kernel"
    kernel_begin(a, name)
    a("s_cmp_ge_u32 s2, 224")
    a("s_cbranch_scc1 L_gu_end")
    ws_srd(a, 4)
    a("v_lshrrev_b32 v1, 6, v0")
    a("v_and_b32 v2, 63, v0")
    a("v_and_b32 v3, 15, v0")
    a("v_bfe_u32 v4, v0, 4, 2")
    a("v_readfirstlane_b32 s3, v1")
    a("v_lshlrev_b32 v5, 4, v2")
    a("s_and_b32 s8, s2, 7")
    a("s_lshr_b32 s9, s2, 3")
    a("s_mul_i32 s10, s9, 37")
    a("s_lshr_b32 s10, s10, 8")
    a("s_mul_i32 s11, s10, 7")
    a("s_sub_u32 s11, s9, s11")
    a("s_lshr_b32 s12, s8, 1")
    a("s_lshl_b32 s12, s12, 2")
    a("s_add_u32 s10, s10, s12")
    a("s_and_b32 s12, s8, 1")
    a("s_mul_i32 s12, s12, 7")
    a("s_add_u32 s11, s11, s12")
    a("s_lshl_b32 s12, s10, 3")
    a("s_lshl_b32 s13, s3, 1")
    a("s_add_u32 s12, s12, s13")
    a("s_mul_i32 s14, s12, %d" % (14 * 1024))
    a("s_add_u32 s15, s14, %d" % (14 * 1024))
    a("s_lshl_b32 s16, s3, 11")
    a("s_lshl_b32 s17, s11, 2")
    a("s_add_u32 s17, s17, s3")
    a("s_mul_i32 s18, s17, %d" % (56 * 1024))
    a("s_add_u32 s18, s18, 0x%x" % WGUF)
    a("s_mov_b32 s20, %s" % ONES_BF)
    a("s_mov_b32 s21, %s" % INV448)
    a("s_mov_b32 s22, %s" % EPS)
    a("s_waitcnt lgkmcnt(0)")
    CSB = 200
    a("s_lshl_b32 s23, s17, 7")
    a("s_add_u32 s24, s23, 0x%x" % CS_U)
    a("s_add_u32 s23, s23, 0x%x" % CS_G)
    a("v_lshlrev_b32 v6, 4, v4")
    for mat in range(2):
        for p in range(2):
            a("buffer_load_dwordx4 %s, v6, s[4:7], s%d offen offset:%d" % (vr(CSB + (mat * 2 + p) * 4), 23 + mat, p * 64))
    for ks in range(14):
        for m in range(2):
            a("s_add_u32 s19, s16, %d" % ((ks * 8 + m) * 1024))
            a("s_mov_b32 m0, s19")
            a("s_add_u32 s25, s%d, %d" % (14 + m, ks * 1024))
            a("buffer_load_dwordx4 v5, s[4:7], s25 offen lds")
        for f in range(4):
            a("buffer_load_dwordx4 %s, v5, s[4:7], s18 offen offset:%d" % (ar((ks * 4 + f) * 4), f * 1024))
        a("s_add_u32 s18, s18, 4096")
    ST = 192
    for k in range(4):
        a("v_mov_b32 v%d, 0" % (ST + k))
    a("v_add_u32 v7, 0x10000, v5")
    ACC = 16 - 16
    ACC = 64
    AB = 0
    AB = 216
    ABUF = [8, 216]

    def lda(ks):
        for mt in range(8):
            off = (ks * 8 + mt) * 1024
            if off < 0x10000:
                a("ds_read_b128 %s, v5 offset:%d" % (vr(ABUF[ks & 1] + mt * 4), off))
            else:
                a("ds_read_b128 %s, v7 offset:%d" % (vr(ABUF[ks & 1] + mt * 4), off - 0x10000))
    chunks = [(0, 4), (4, 9), (9, 14)]
    for (c0, c1) in chunks:
        a("s_waitcnt vmcnt(%d)" % ((14 - c1) * 6))
        a("s_barrier")
        lda(c0)
        for ks in range(c0, c1):
            if ks + 1 < c1:
                lda(ks + 1)
                a("s_waitcnt lgkmcnt(8)")
            else:
                a("s_waitcnt lgkmcnt(0)")
            ab = ABUF[ks & 1]
            for mt in range(8):
                for f in range(4):
                    acc = ACC + (mt * 4 + f) * 4
                    a("v_mfma_f32_16x16x32_bf16 %s, %s, %s, %s" % (vr(acc), ar((ks * 4 + f) * 4), vr(ab + mt * 4), "0" if ks == 0 else vr(acc)))
            lend = a.newlabel("gu_st_end")
            for w in range(4):
                lnext = a.newlabel("gu_st")
                a("s_cmp_lg_u32 s3, %d" % w)
                a("s_cbranch_scc1 %s" % lnext)
                for m in range(2):
                    af = ab + (2 * w + m) * 4
                    for k in range(4):
                        a("v_dot2c_f32_bf16 v%d, s20, v%d" % (ST + m, af + k))
                        a("v_dot2c_f32_bf16 v%d, v%d, v%d" % (ST + 2 + m, af + k, af + k))
                a("s_branch %s" % lend)
                a.label(lnext)
            a.label(lend)
    a("s_nop 3")
    for k in range(4):
        reduce_g(a, ST + k, 196)
    for m in range(2):
        ln_stats(a, ST + m, ST + 2 + m, 196, 21, 22)
    a("s_barrier")
    a("s_lshl_b32 s23, s3, 8")
    a("s_add_u32 s23, s23, 114688")
    a("v_lshlrev_b32 v6, 3, v3")
    a("v_add_u32 v8, s23, v6")
    a("v_mov_b32 v10, v%d" % ST)
    a("v_mov_b32 v11, v%d" % (ST + 2))
    a("v_mov_b32 v12, v%d" % (ST + 1))
    a("v_mov_b32 v13, v%d" % (ST + 3))
    a("ds_write_b64 v8, v[10:11]")
    a("ds_write_b64 v8, v[12:13] offset:128")
    a("s_waitcnt lgkmcnt(0)")
    a("s_barrier")
    a("v_add_u32 v8, 114688, v6")
    for mt in range(8):
        a("ds_read_b64 %s, v8 offset:%d" % (vr(16 + mt * 2, 2), mt * 128))
    a("s_waitcnt lgkmcnt(0)")
    a("s_lshl_b32 s12, s10, 3")
    a("s_mul_i32 s12, s12, %d" % (56 * 1024))
    a("s_lshl_b32 s13, s17, 10")
    a("s_add_u32 s12, s12, s13")
    a("s_add_u32 s12, s12, 0x%x" % HF)
    for mt in range(8):
        nm = 16 + mt * 2
        rs = nm + 1
        a("v_mul_f32 v%d, v%d, v%d" % (rs, rs, rs))
        for p in range(2):
            g = ACC + (mt * 4 + p) * 4
            u = ACC + (mt * 4 + 2 + p) * 4
            for r in range(4):
                a("v_fma_f32 v%d, v%d, v%d, v%d" % (g + r, nm, CSB + p * 4 + r, g + r))
                a("v_fma_f32 v%d, v%d, v%d, v%d" % (u + r, nm, CSB + 8 + p * 4 + r, u + r))
                a("v_mul_f32 v%d, v%d, v%d" % (g + r, g + r, u + r))
                a("v_mul_f32 v%d, v%d, v%d" % (g + r, g + r, rs))
        d = 32 + (mt & 3) * 4
        for p in range(2):
            g = ACC + (mt * 4 + p) * 4
            a("v_cvt_pk_bf16_f32 v%d, v%d, v%d" % (d + 2 * p, g, g + 1))
            a("v_cvt_pk_bf16_f32 v%d, v%d, v%d" % (d + 2 * p + 1, g + 2, g + 3))
        a("buffer_store_dwordx4 %s, v5, s[4:7], s12 offen" % vr(d))
        a("s_add_u32 s12, s12, %d" % (56 * 1024))
    a.label("L_gu_end")
    a("s_endpgm")
    kernel_desc(name, 256 + 224, 40, 256)


def main():
    a = Asm()
    gen_prep(a)
    gen_qkv(a)
    gen_attn(a)
    gen_gemm_res(a, "wo_kernel", 16, OF, WOF, False)
    gen_gateup(a)
    gen_gemm_res(a, "down_kernel", 56, HF, WDF, False)
    gen_gemm_res(a, "downf_kernel", 56, HF, WDF, True)
    hdr = open("cdna_kernels/%s.s.ref" % NAME).read().split("\n")
    head = [l for l in hdr if l.startswith(";") and "@launch" not in l and "Override launch" not in l and "grid=ceil" not in l]
    launches = [
        ("prep_kernel", 588, 256, 256),
        ("qkv_kernel", 256, 256, 86016),
        ("attn_kernel", 256, 256, 0),
        ("wo_kernel", 224, 256, 65536),
        ("gateup_kernel", 224, 256, 114688 + 1024),
        ("down_kernel", 224, 256, 65536),
        ("qkv_kernel", 256, 256, 86016),
        ("attn_kernel", 256, 256, 0),
        ("wo_kernel", 224, 256, 65536),
        ("gateup_kernel", 224, 256, 114688 + 1024),
        ("downf_kernel", 224, 256, 65536),
    ]
    out = "\n".join(head) + "\n"
    for (k, g, b, l) in launches:
        out += "; @launch kernel=%s grid=(%d,1,1) block=(%d,1,1) lds=%d\n" % (k, g, b, l)
    out += '.amdgcn_target "amdgcn-amd-amdhsa--gfx950"\n.text\n'
    out += a.text()
    out += '.section .rodata,"a"\n'
    for kd in KDS:
        out += ".p2align 6\n" + kd + "\n"
    path = sys.argv[1] if len(sys.argv) > 1 else "cdna_kernels/%s.s" % NAME
    open(path, "w").write(out)
    print("wrote", path, len(out))


if __name__ == "__main__":
    main()
```

```python
import sys, struct, math

NAME = "interleave_layers__sliding_block__glu_gated_bilinear__prompt"

XF = 0x0
WQKVF = 0x200000
WOF = 0x380000
WGUF = 0x400000
WDF = 0x800000
CS = 0xA00000
CS_G = CS + 8192
CS_U = CS + 16384
STP = 0xA10000
QF = 0xC00000
KF = 0xE00000
VF = 0x1000000
OF = 0x1200000
HF = 0x1400000
WS_SIZE = 0x4000000

OUT_BYTES = 2048 * 448 * 2
INV448 = "0x3b124925"
EPS = "0x3727c5ac"
ONES_BF = "0x3f803f80"


class Asm:
    def __init__(self):
        self.lines = []
        self.uid = 0
        self.vm = []
        self.lg = []

    def reset_counters(self):
        self.vm = []
        self.lg = []

    def __call__(self, s):
        for l in s.strip("\n").split("\n"):
            l = l.strip()
            if l.startswith("@vm:"):
                self.vm.append(l[4:])
            elif l.startswith("@lg:"):
                self.lg.append(l[4:])
            elif l.startswith("@vmwait:"):
                tag = l[8:]
                idx = max(i for i, t in enumerate(self.vm) if t == tag)
                n = len(self.vm) - 1 - idx
                self.lines.append("    s_waitcnt vmcnt(%d)" % min(n, 63))
            elif l.startswith("@lgwait:"):
                tag = l[8:]
                idx = max(i for i, t in enumerate(self.lg) if t == tag)
                n = len(self.lg) - 1 - idx
                self.lines.append("    s_waitcnt lgkmcnt(%d)" % min(n, 15))
            else:
                self.lines.append("    " + l)

    def label(self, l):
        self.lines.append(l + ":")

    def raw(self, s):
        self.lines.append(s)

    def newlabel(self, base):
        self.uid += 1
        return "L_%s_%d" % (base, self.uid)

    def text(self):
        return "\n".join(self.lines) + "\n"


def vr(b, n=4, k="v"):
    return "%s[%d:%d]" % (k, b, b + n - 1)


def ar(b, n=4):
    return vr(b, n, "a")


def kernel_begin(a, name):
    a.raw(".globl %s" % name)
    a.raw(".p2align 8")
    a.raw(".type %s,@function" % name)
    a.label(name)
    a.reset_counters()


KDS = []
STAMP = False
STAMP_BASE = 0x2000000
_stamp_n = [0]
_kern_idx = [0]


def kernel_desc(name, vgpr, sgpr, accum):
    if STAMP:
        sgpr = 96
    KDS.append(""".amdhsa_kernel %s
  .amdhsa_next_free_vgpr %d
  .amdhsa_next_free_sgpr %d
  .amdhsa_accum_offset %d
  .amdhsa_group_segment_fixed_size 0
  .amdhsa_kernarg_size 80
  .amdhsa_user_sgpr_count 2
  .amdhsa_user_sgpr_kernarg_segment_ptr 1
  .amdhsa_system_sgpr_workgroup_id_x 1
.end_amdhsa_kernel""" % (name, vgpr, sgpr, accum))


def stamp(a):
    if not STAMP:
        return
    k = _stamp_n[0]
    _stamp_n[0] += 1
    a("s_memrealtime s[%d:%d]" % (60 + 2 * k, 61 + 2 * k))


def stamp_flush(a, srd):
    if not STAMP:
        return
    n = _stamp_n[0]
    a("s_memrealtime s[%d:%d]" % (60 + 2 * n, 61 + 2 * n))
    n += 1
    a("s_waitcnt lgkmcnt(0) vmcnt(0)")
    a("s_lshl_b32 s58, s2, 2")
    a("s_add_u32 s58, s58, s3")
    a("s_add_u32 s58, s58, %d" % (_kern_idx[0] * 4096))
    a("s_lshl_b32 s58, s58, 6")
    a("s_add_u32 s58, s58, 0x%x" % STAMP_BASE)
    a("v_mov_b32 v1, 0")
    for k in range(n):
        a("v_mov_b32 v2, s%d" % (60 + 2 * k))
        a("buffer_store_dword v2, v1, s[%d:%d], s58 offen offset:%d" % (srd, srd + 3, 4 * k))
    _stamp_n[0] = 0
    _kern_idx[0] += 1


def ws_srd(a, s):
    a("s_load_dwordx2 s[%d:%d], s[0:1], 72" % (s, s + 1))
    a("s_mov_b32 s%d, 0x%x" % (s + 2, WS_SIZE))
    a("s_mov_b32 s%d, 0x20000" % (s + 3))


def lane_setup(a):
    a("v_lshrrev_b32 v1, 6, v0")
    a("v_and_b32 v2, 63, v0")
    a("v_and_b32 v3, 15, v0")
    a("v_bfe_u32 v4, v0, 4, 2")
    a("v_readfirstlane_b32 s3, v1")
    a("v_lshlrev_b32 v5, 4, v2")


def reduce_g(a, x, t, op="v_add_f32"):
    a("v_mov_b32 v%d, v%d" % (t, x))
    a("s_nop 1")
    a("v_permlane16_swap_b32 v%d, v%d" % (x, t))
    a("%s v%d, v%d, v%d" % (op, x, x, t))
    a("v_mov_b32 v%d, v%d" % (t, x))
    a("s_nop 1")
    a("v_permlane32_swap_b32 v%d, v%d" % (x, t))
    a("%s v%d, v%d, v%d" % (op, x, x, t))


def reduce_g_multi(a, xs, ts, op="v_add_f32"):
    for perm in ("v_permlane16_swap_b32", "v_permlane32_swap_b32"):
        for x, t in zip(xs, ts):
            a("v_mov_b32 v%d, v%d" % (t, x))
        if len(xs) < 3:
            a("s_nop 1")
        for x, t in zip(xs, ts):
            a("%s v%d, v%d" % (perm, x, t))
        for x, t in zip(xs, ts):
            a("%s v%d, v%d, v%d" % (op, x, x, t))


def ln_stats(a, s1, s2, t, sinv, seps):
    a("v_mul_f32 v%d, s%d, v%d" % (s1, sinv, s1))
    a("v_mul_f32 v%d, s%d, v%d" % (s2, sinv, s2))
    a("v_fma_f32 v%d, -v%d, v%d, v%d" % (s2, s1, s1, s2))
    a("v_max_f32 v%d, 0, v%d" % (s2, s2))
    a("v_cvt_pk_bf16_f32 v%d, v%d, v%d" % (t, s1, s2))
    a("v_lshlrev_b32 v%d, 16, v%d" % (s1, t))
    a("v_xor_b32 v%d, 0x80000000, v%d" % (s1, s1))
    a("v_and_b32 v%d, 0xffff0000, v%d" % (s2, t))
    a("v_add_f32 v%d, s%d, v%d" % (s2, seps, s2))
    a("v_cvt_pk_bf16_f32 v%d, v%d, v%d" % (s2, s2, s2))
    a("v_and_b32 v%d, 0xffff0000, v%d" % (s2, s2))
    a("v_sqrt_f32 v%d, v%d" % (s2, s2))
    a("s_nop 0")
    a("v_cvt_pk_bf16_f32 v%d, v%d, v%d" % (s2, s2, s2))
    a("v_and_b32 v%d, 0xffff0000, v%d" % (s2, s2))
    a("v_rcp_f32 v%d, v%d" % (s2, s2))
    a("s_nop 0")


def interleave(a, main, side, start=0, end=None):
    n = len(main)
    if end is None:
        end = n
    span = max(end - start, 1)
    k = len(side)
    pos = [start + (i * span) // k for i in range(k)] if k else []
    j = 0
    for i, m in enumerate(main):
        while j < k and pos[j] <= i:
            for l in side[j]:
                a(l)
            j += 1
        a(m)
    while j < k:
        for l in side[j]:
            a(l)
        j += 1


def stats_load(a, smt, vdst, vtmp, tag):
    a("v_lshlrev_b32 v%d, 14, v4" % vtmp)
    a("v_lshl_add_u32 v%d, v3, 3, v%d" % (vtmp, vtmp))
    a("v_add_u32 v%d, 0x10000, v%d" % (vtmp + 1, vtmp))
    a("v_cmp_gt_u32 vcc, 3, v4")
    a("v_mov_b32 v%d, 0x40000000" % (vdst))
    a("s_lshl_b32 s30, s%d, 7" % smt)
    a("s_add_u32 s30, s30, 0x%x" % STP)
    a("v_cndmask_b32 v%d, v%d, v%d, vcc" % (vtmp + 1, vdst, vtmp + 1))
    for m in range(2):
        a("@vm:" + tag)
        a("buffer_load_dwordx2 %s, v%d, s[4:7], s30 offen offset:%d" % (vr(vdst + m * 4, 2), vtmp, m * 128))
        a("@vm:" + tag)
        a("buffer_load_dwordx2 %s, v%d, s[4:7], s30 offen offset:%d" % (vr(vdst + m * 4 + 2, 2), vtmp + 1, m * 128))


def stats_finish(a, vsrc, ST, tmps, sinv, seps):
    for m in range(2):
        a("v_add_f32 v%d, v%d, v%d" % (ST + m, vsrc + m * 4, vsrc + m * 4 + 2))
        a("v_add_f32 v%d, v%d, v%d" % (ST + 2 + m, vsrc + m * 4 + 1, vsrc + m * 4 + 3))
    reduce_g_multi(a, [ST, ST + 1, ST + 2, ST + 3], tmps)
    for m in range(2):
        ln_stats(a, ST + m, ST + 2 + m, tmps[0], sinv, seps)


def gen_prep(a):
    name = "prep_kernel"
    kernel_begin(a, name)
    a("s_cmp_ge_u32 s2, 588")
    a("s_cbranch_scc1 L_prep_end")
    a("s_load_dwordx16 s[8:23], s[0:1], 0")
    a("s_load_dwordx2 s[28:29], s[0:1], 72")
    lane_setup(a)
    a("s_mov_b32 s30, 0x%x" % WS_SIZE)
    a("s_mov_b32 s31, 0x20000")
    a("s_mov_b32 s7, 0x20000")
    a("s_waitcnt lgkmcnt(0)")
    a("s_cmp_ge_u32 s2, 460")
    a("s_cbranch_scc1 L_prep_x")
    a("s_cmp_ge_u32 s2, 432")
    a("s_cbranch_scc1 L_prep_wo")
    a("s_cmp_ge_u32 s2, 320")
    a("s_cbranch_scc1 L_prep_wd")
    a("s_cmp_ge_u32 s2, 96")
    a("s_cbranch_scc1 L_prep_gu")
    a("s_mul_i32 s40, s2, 43")
    a("s_lshr_b32 s40, s40, 8")
    a("s_mul_i32 s41, s40, 6")
    a("s_sub_u32 s41, s2, s41")
    a("s_mov_b32 s4, s10")
    a("s_mov_b32 s5, s11")
    a("s_mov_b32 s6, %d" % (448 * 1344 * 2))
    a("s_mov_b32 s32, 2688")
    a("s_mov_b32 s33, %d" % (32 * 2688))
    a("s_mul_i32 s34, s40, %d" % (14 * 6 * 1024))
    a("s_lshl_b32 s42, s41, 10")
    a("s_add_u32 s34, s34, s42")
    a("s_add_u32 s34, s34, 0x%x" % WQKVF)
    a("s_mov_b32 s35, %d" % (6 * 1024))
    a("s_mov_b32 s36, 14")
    a("s_lshl_b32 s37, s2, 6")
    a("s_add_u32 s37, s37, 0x%x" % CS)
    a("s_mov_b32 s38, 0")
    a("s_lshr_b32 s42, s41, 1")
    a("s_mul_i32 s42, s42, 448")
    a("s_mul_i32 s43, s40, 28")
    a("s_add_u32 s42, s42, s43")
    a("s_and_b32 s43, s41, 1")
    a("s_lshl_b32 s43, s43, 4")
    a("v_add_u32 v6, s43, v3")
    a("v_add_u32 v7, s42, v6")
    a("v_lshlrev_b32 v7, 1, v7")
    a("v_mul_u32_u24 v8, %d, v4" % (4 * 2688))
    a("v_add_u32 v7, v7, v8")
    a("v_add_u32 v9, %d, v7" % (16 * 2688))
    a("v_cmp_gt_u32 vcc, 28, v6")
    a("v_mov_b32 v10, 0x40000000")
    a("s_nop 1")
    a("v_cndmask_b32 v7, v10, v7, vcc")
    a("v_cndmask_b32 v9, v10, v9, vcc")
    a("s_branch L_prep_gather")
    a.label("L_prep_gu")
    a("s_sub_u32 s40, s2, 96")
    a("s_cmp_ge_u32 s40, 112")
    a("s_cselect_b32 s41, 1, 0")
    a("s_cselect_b32 s4, s18, s16")
    a("s_cselect_b32 s5, s19, s17")
    a("s_mul_i32 s42, s41, 112")
    a("s_sub_u32 s40, s40, s42")
    a("s_mov_b32 s6, %d" % (448 * 1792 * 2))
    a("s_mov_b32 s32, 3584")
    a("s_mov_b32 s33, %d" % (32 * 3584))
    a("s_lshr_b32 s42, s40, 1")
    a("s_mul_i32 s34, s42, %d" % (14 * 4 * 1024))
    a("s_lshl_b32 s42, s41, 1")
    a("s_and_b32 s43, s40, 1")
    a("s_add_u32 s42, s42, s43")
    a("s_lshl_b32 s42, s42, 10")
    a("s_add_u32 s34, s34, s42")
    a("s_add_u32 s34, s34, 0x%x" % WGUF)
    a("s_mov_b32 s35, 4096")
    a("s_mov_b32 s36, 14")
    a("s_lshl_b32 s37, s40, 6")
    a("s_lshl_b32 s42, s41, 13")
    a("s_add_u32 s37, s37, s42")
    a("s_add_u32 s37, s37, 0x%x" % CS_G)
    a("s_mov_b32 s38, 0")
    a("s_lshl_b32 s42, s40, 4")
    a("v_add_u32 v7, s42, v3")
    a("v_lshlrev_b32 v7, 1, v7")
    a("v_mul_u32_u24 v8, %d, v4" % (4 * 3584))
    a("v_add_u32 v7, v7, v8")
    a("v_add_u32 v9, %d, v7" % (16 * 3584))
    a("s_branch L_prep_gather")
    a.label("L_prep_wd")
    a("s_sub_u32 s40, s2, 320")
    a("s_and_b32 s41, s40, 3")
    a("s_lshr_b32 s40, s40, 2")
    a("s_mov_b32 s4, s20")
    a("s_mov_b32 s5, s21")
    a("s_mov_b32 s6, %d" % (1792 * 448 * 2))
    a("s_mov_b32 s32, 896")
    a("s_mov_b32 s33, %d" % (32 * 896))
    a("s_mul_i32 s34, s40, %d" % (56 * 1024))
    a("s_mul_i32 s42, s41, %d" % (14 * 1024))
    a("s_add_u32 s34, s34, s42")
    a("s_add_u32 s34, s34, 0x%x" % WDF)
    a("s_mov_b32 s35, 1024")
    a("s_mov_b32 s36, 14")
    a("s_mov_b32 s37, -1")
    a("s_mul_i32 s38, s41, %d" % (14 * 32 * 896))
    a("s_lshl_b32 s42, s40, 4")
    a("v_add_u32 v7, s42, v3")
    a("v_lshlrev_b32 v7, 1, v7")
    a("v_mul_u32_u24 v8, %d, v4" % (4 * 896))
    a("v_add_u32 v7, v7, v8")
    a("v_add_u32 v9, %d, v7" % (16 * 896))
    a("s_branch L_prep_gather")
    a.label("L_prep_wo")
    a("s_sub_u32 s40, s2, 432")
    a("s_mov_b32 s4, s12")
    a("s_mov_b32 s5, s13")
    a("s_mov_b32 s6, %d" % (448 * 448 * 2))
    a("s_mov_b32 s32, 896")
    a("s_mov_b32 s33, %d" % (28 * 896))
    a("s_lshl_b32 s34, s40, 14")
    a("s_add_u32 s34, s34, 0x%x" % WOF)
    a("s_mov_b32 s35, 1024")
    a("s_mov_b32 s36, 16")
    a("s_mov_b32 s37, -1")
    a("s_mov_b32 s38, 0")
    a("s_lshl_b32 s42, s40, 4")
    a("v_add_u32 v7, s42, v3")
    a("v_lshlrev_b32 v7, 1, v7")
    a("v_mul_u32_u24 v8, %d, v4" % (4 * 896))
    a("v_add_u32 v7, v7, v8")
    a("v_add_u32 v9, %d, v7" % (16 * 896))
    a("v_cmp_gt_u32 vcc, 3, v4")
    a("v_mov_b32 v10, 0x40000000")
    a("s_nop 1")
    a("v_cndmask_b32 v9, v10, v9, vcc")
    a("s_branch L_prep_gather")
    a.label("L_prep_gather")
    a("v_mov_b32 v60, 0")
    for q in range(4):
        lskip = a.newlabel("prep_skipld")
        a("s_add_u32 s44, s3, %d" % (4 * q))
        a("s_cmp_ge_u32 s44, s36")
        a("s_cbranch_scc1 %s" % lskip)
        a("s_mul_i32 s45, s44, s33")
        a("s_add_u32 s45, s45, s38")
        a("s_add_u32 s46, s45, s32")
        a("s_add_u32 s47, s46, s32")
        a("s_add_u32 s48, s47, s32")
        b = 16 + q * 8
        for j in range(4):
            a("buffer_load_ushort v%d, v7, s[4:7], s%d offen" % (b + j, 45 + j))
        for j in range(4):
            a("buffer_load_ushort v%d, v9, s[4:7], s%d offen" % (b + 4 + j, 45 + j))
        a.label(lskip)
    a("s_waitcnt vmcnt(0)")
    for q in range(4):
        lskip = a.newlabel("prep_skipst")
        a("s_add_u32 s44, s3, %d" % (4 * q))
        a("s_cmp_ge_u32 s44, s36")
        a("s_cbranch_scc1 %s" % lskip)
        b = 16 + q * 8
        d = 64 + q * 4
        for j in range(4):
            a("v_lshl_or_b32 v%d, v%d, 16, v%d" % (d + j, b + 2 * j + 1, b + 2 * j))
        for j in range(8):
            a("v_lshlrev_b32 v%d, 16, v%d" % (b + j, b + j))
        for j in range(8):
            a("v_add_f32 v60, v60, v%d" % (b + j))
        a("s_mul_i32 s45, s44, s35")
        a("s_add_u32 s45, s45, s34")
        a("buffer_store_dwordx4 %s, v5, s[28:31], s45 offen" % vr(d))
        a.label(lskip)
    a("s_cmp_eq_u32 s37, -1")
    a("s_cbranch_scc1 L_prep_end")
    reduce_g(a, 60, 61)
    a("s_lshl_b32 s44, s3, 6")
    a("v_lshlrev_b32 v62, 2, v3")
    a("v_add_u32 v63, s44, v62")
    a("ds_write_b32 v63, v60")
    a("s_waitcnt lgkmcnt(0)")
    a("s_barrier")
    a("s_cmp_lg_u32 s3, 0")
    a("s_cbranch_scc1 L_prep_end")
    a("ds_read_b32 v16, v62")
    a("ds_read_b32 v17, v62 offset:64")
    a("ds_read_b32 v18, v62 offset:128")
    a("ds_read_b32 v19, v62 offset:192")
    a("s_waitcnt lgkmcnt(0)")
    a("v_add_f32 v16, v16, v17")
    a("v_add_f32 v18, v18, v19")
    a("v_add_f32 v16, v16, v18")
    a("buffer_store_dword v16, v62, s[28:31], s37 offen")
    a("s_branch L_prep_end")
    a.label("L_prep_x")
    a("s_sub_u32 s40, s2, 460")
    a("s_mov_b32 s4, s8")
    a("s_mov_b32 s5, s9")
    a("s_mov_b32 s6, %d" % OUT_BYTES)
    a("s_mov_b32 s39, %s" % ONES_BF)
    a("s_lshl_b32 s42, s40, 4")
    a("v_add_u32 v7, s42, v3")
    a("v_lshlrev_b32 v11, 3, v7")
    a("v_mul_u32_u24 v7, 896, v7")
    a("v_lshlrev_b32 v8, 3, v4")
    a("v_add_u32 v7, v7, v8")
    a("s_mul_i32 s34, s40, %d" % (14 * 1024))
    a("s_add_u32 s34, s34, 0x%x" % XF)
    a("v_mov_b32 v60, 0")
    a("v_mov_b32 v61, 0")
    for q in range(4):
        lskip = a.newlabel("prep_xld")
        a("s_add_u32 s44, s3, %d" % (4 * q))
        a("s_cmp_ge_u32 s44, 14")
        a("s_cbranch_scc1 %s" % lskip)
        a("s_lshl_b32 s45, s44, 6")
        b = 16 + q * 4
        a("buffer_load_dwordx2 %s, v7, s[4:7], s45 offen" % vr(b, 2))
        a("buffer_load_dwordx2 %s, v7, s[4:7], s45 offen offset:32" % vr(b + 2, 2))
        a.label(lskip)
    a("s_waitcnt vmcnt(0)")
    for q in range(4):
        lskip = a.newlabel("prep_xst")
        a("s_add_u32 s44, s3, %d" % (4 * q))
        a("s_cmp_ge_u32 s44, 14")
        a("s_cbranch_scc1 %s" % lskip)
        a("s_lshl_b32 s45, s44, 10")
        a("s_add_u32 s45, s45, s34")
        b = 16 + q * 4
        a("buffer_store_dwordx4 %s, v5, s[28:31], s45 offen" % vr(b))
        for k in range(4):
            a("v_dot2c_f32_bf16 v60, s39, v%d" % (b + k))
            a("v_dot2c_f32_bf16 v61, v%d, v%d" % (b + k, b + k))
        a.label(lskip)
    a("s_nop 3")
    reduce_g_multi(a, [60, 61], [62, 63])
    a("s_lshl_b32 s45, s3, 14")
    a("s_add_u32 s45, s45, 0x%x" % STP)
    a("buffer_store_dwordx2 v[60:61], v11, s[28:31], s45 offen")
    a("s_cmp_ge_u32 s3, 3")
    a("s_cbranch_scc1 L_prep_end")
    a("v_mov_b32 v62, 0")
    a("v_mov_b32 v63, 0")
    a("s_add_u32 s45, s45, 0x10000")
    a("buffer_store_dwordx2 v[62:63], v11, s[28:31], s45 offen")
    a.label("L_prep_end")
    a("s_endpgm")
    kernel_desc(name, 80, 56, 80)


def gen_qkv(a):
    name = "qkv_kernel"
    kernel_begin(a, name)
    a("s_cmp_ge_u32 s2, 256")
    a("s_cbranch_scc1 L_qkv_end")
    stamp(a)
    ws_srd(a, 4)
    lane_setup(a)
    a("s_and_b32 s8, s2, 7")
    a("s_lshr_b32 s9, s2, 3")
    a("s_lshr_b32 s10, s8, 1")
    a("s_lshl_b32 s10, s10, 2")
    a("s_lshr_b32 s11, s9, 3")
    a("s_add_u32 s10, s10, s11")
    a("s_and_b32 s11, s8, 1")
    a("s_lshl_b32 s11, s11, 3")
    a("s_and_b32 s12, s9, 7")
    a("s_add_u32 s11, s11, s12")
    a("s_lshl_b32 s12, s10, 3")
    a("s_lshl_b32 s13, s3, 1")
    a("s_add_u32 s12, s12, s13")
    a("s_mul_i32 s14, s12, %d" % (14 * 1024))
    a("s_add_u32 s15, s14, %d" % (14 * 1024))
    a("s_mul_i32 s16, s11, %d" % (84 * 1024))
    a("s_add_u32 s16, s16, 0x%x" % WQKVF)
    a("s_mul_i32 s17, s3, %d" % (3 * 1024))
    a("s_add_u32 s16, s16, s17")
    a("s_mov_b32 s21, %s" % INV448)
    a("s_mov_b32 s22, %s" % EPS)
    a("v_add_u32 v8, 61440, v5")
    a("s_waitcnt lgkmcnt(0)")
    AB = 16
    CSB = 228
    ST = 224
    SL = 246
    stats_load(a, 12, SL, 6, "st")
    a("s_mul_i32 s25, s11, 384")
    a("s_add_u32 s25, s25, 0x%x" % CS)
    a("v_lshlrev_b32 v10, 4, v4")
    a("v_lshlrev_b32 v11, 2, v3")
    for nt in range(4):
        a("@vm:cs")
        a("buffer_load_dwordx4 %s, v10, s[4:7], s25 offen offset:%d" % (vr(CSB + nt * 4), nt * 64))
    for nt in range(4, 6):
        a("@vm:cs")
        a("buffer_load_dword v%d, v11, s[4:7], s25 offen offset:%d" % (CSB + 16 + nt - 4, nt * 64))

    def chunk_loads(c):
        g = []
        first = ["s_add_u32 s18, s17, %d" % (c * 12 * 1024), "s_mov_b32 m0, s18", "s_add_u32 s19, s16, %d" % (c * 12 * 1024)]
        for j in range(3):
            g.append((first if j == 0 else []) + ["@vm:c%d" % c, "buffer_load_dwordx4 v5, s[4:7], s19 offen offset:%d lds" % (j * 1024)])
        pre = ["s_add_u32 s23, s14, %d" % (c * 2048), "s_add_u32 s24, s15, %d" % (c * 2048)]
        for k2 in range(2):
            ks = 2 * c + k2
            for m in range(2):
                g.append((pre if (k2 == 0 and m == 0) else []) + ["@vm:c%d" % c,
                         "buffer_load_dwordx4 %s, v5, s[4:7], s%d offen offset:%d" % (vr(AB + (m * 14 + ks) * 4), 23 + m, k2 * 1024)])
        return g
    PD = 3
    for c in range(PD):
        for g in chunk_loads(c):
            for l in g:
                a(l)
    stamp(a)
    a("@vmwait:st")
    stats_finish(a, SL, ST, [12, 13, 14, 15], 21, 22)
    a("@vmwait:c0")
    a("s_barrier")
    stamp(a)
    ACC = 128
    BB = 176

    def ldb(ks):
        return [["@lg:b%d_%d" % (ks, nt), "ds_read_b128 %s, v%d offset:%d" % (vr(BB + (ks & 1) * 24 + nt * 4), 5 if ks < 10 else 8,
                 ((ks * 6 + nt) * 1024) - (0 if ks < 10 else 61440))] for nt in range(6)]
    for g in ldb(0):
        for l in g:
            a(l)
    for ks in range(14):
        mf = []
        for m in range(2):
            af = AB + (m * 14 + ks) * 4
            for nt in range(6):
                bf = BB + (ks & 1) * 24 + nt * 4
                acc = ACC + (m * 6 + nt) * 4
                c = "0" if ks == 0 else vr(acc)
                pre = "@lgwait:b%d_%d\n" % (ks, nt) if m == 0 else ""
                if nt < 4:
                    mf.append(pre + "v_mfma_f32_16x16x32_bf16 %s, %s, %s, %s" % (vr(acc), vr(bf), vr(af), c))
                else:
                    mf.append(pre + "v_mfma_f32_16x16x32_bf16 %s, %s, %s, %s" % (vr(acc), vr(af), vr(bf), c))
        c = ks // 2
        side1 = chunk_loads(c + PD) if (ks % 2 == 0 and c + PD < 7) else []
        interleave(a, mf[:6], side1)
        if ks % 2 == 1 and ks + 1 < 14:
            a("@vmwait:c%d" % (c + 1))
            a("s_barrier")
        side2 = ldb(ks + 1) if ks + 1 < 14 else []
        interleave(a, mf[6:], side2)
    stamp(a)
    a("v_lshlrev_b32 v10, 4, v4")
    for r in range(4):
        a("v_add_u32 v%d, %d, v10" % (11 + r, 4 * r))
    for m in range(2):
        for r in range(4):
            a("ds_bpermute_b32 v%d, v%d, v%d" % (16 + m * 4 + r, 11 + r, ST + m))
            a("ds_bpermute_b32 v%d, v%d, v%d" % (24 + m * 4 + r, 11 + r, ST + 2 + m))
    a("s_lshl_b32 s26, s11, 17")
    a("s_lshl_b32 s27, s12, 10")
    a("s_add_u32 s26, s26, s27")
    a("s_add_u32 s28, s26, 0x%x" % VF)
    a("s_add_u32 s27, s26, 0x%x" % KF)
    a("s_add_u32 s26, s26, 0x%x" % QF)
    for m in range(2):
        for qk in range(2):
            for p in range(2):
                nt = qk * 2 + p
                acc = ACC + (m * 6 + nt) * 4
                for r in range(0, 4, 2):
                    a("v_pk_fma_f32 %s, %s, %s, %s op_sel:[%d,0,0] op_sel_hi:[%d,1,1]" % (vr(acc + r, 2), vr(ST, 2), vr(CSB + nt * 4 + r, 2), vr(acc + r, 2), m, m))
                for r in range(0, 4, 2):
                    a("v_pk_mul_f32 %s, %s, %s op_sel:[%d,0] op_sel_hi:[%d,1]" % (vr(acc + r, 2), vr(ST + 2, 2), vr(acc + r, 2), m, m))
            d = 32 + (m * 2 + qk) * 4
            for p in range(2):
                acc = ACC + (m * 6 + qk * 2 + p) * 4
                a("v_cvt_pk_bf16_f32 v%d, v%d, v%d" % (d + 2 * p, acc, acc + 1))
                a("v_cvt_pk_bf16_f32 v%d, v%d, v%d" % (d + 2 * p + 1, acc + 2, acc + 3))
            a("buffer_store_dwordx4 %s, v5, s[4:7], s%d offen offset:%d" % (vr(d), 26 + qk, m * 1024))
    a("s_waitcnt lgkmcnt(0)")
    a("v_cmp_eq_u32 vcc, 12, v3")
    for dt in range(2):
        nt = 4 + dt
        for m in range(2):
            acc = ACC + (m * 6 + nt) * 4
            for r in range(4):
                a("v_fma_f32 v%d, v%d, v%d, v%d" % (acc + r, 16 + m * 4 + r, CSB + 16 + dt, acc + r))
            for r in range(0, 4, 2):
                a("v_pk_mul_f32 %s, %s, %s" % (vr(acc + r, 2), vr(24 + m * 4 + r, 2), vr(acc + r, 2)))
            if dt == 1:
                for r in range(4):
                    a("v_cndmask_b32 v%d, v%d, 1.0, vcc" % (acc + r, acc + r))
        d = 48 + dt * 4
        for m in range(2):
            acc = ACC + (m * 6 + nt) * 4
            a("v_cvt_pk_bf16_f32 v%d, v%d, v%d" % (d + 2 * m, acc, acc + 1))
            a("v_cvt_pk_bf16_f32 v%d, v%d, v%d" % (d + 2 * m + 1, acc + 2, acc + 3))
        a("buffer_store_dwordx4 %s, v5, s[4:7], s28 offen offset:%d" % (vr(d), dt * 1024))
    stamp_flush(a, 4)
    a.label("L_qkv_end")
    a("s_endpgm")
    kernel_desc(name, 256, 40, 256)


def gen_attn(a):
    name = "attn_kernel"
    kernel_begin(a, name)
    a("s_cmp_ge_u32 s2, 256")
    a("s_cbranch_scc1 L_attn_end")
    stamp(a)
    ws_srd(a, 4)
    lane_setup(a)
    a("s_and_b32 s8, s2, 7")
    a("s_lshr_b32 s9, s2, 3")
    a("s_lshl_b32 s10, s8, 1")
    a("s_lshr_b32 s11, s9, 4")
    a("s_add_u32 s10, s10, s11")
    a("s_and_b32 s11, s9, 15")
    a("s_lshl_b32 s11, s11, 2")
    a("s_add_u32 s11, s11, s3")
    a("s_lshl_b32 s12, s10, 17")
    a("s_lshl_b32 s13, s11, 11")
    a("s_add_u32 s12, s12, s13")
    a("s_add_u32 s14, s12, 0x%x" % QF)
    a("s_add_u32 s15, s12, 0x%x" % (KF - 16 * 1024))
    a("s_add_u32 s16, s12, 0x%x" % (VF - 16 * 1024))
    a("s_waitcnt lgkmcnt(0)")
    QB = 8
    for t in range(2):
        a("@vm:q")
        a("buffer_load_dwordx4 %s, v5, s[4:7], s14 offen offset:%d" % (vr(QB + 4 * t), t * 1024))
    for kt in range(18):
        a("@vm:k%d" % kt)
        a("buffer_load_dwordx4 %s, v5, s[4:7], s15 offen offset:%d" % (ar(kt * 4), (kt % 4) * 1024))
        if kt % 4 == 3:
            a("s_add_u32 s15, s15, 4096")
    a("v_lshlrev_b32 v6, 2, v4")
    for r in range(4):
        a("v_add_u32 v7, %d, v6" % r)
        a("v_cmp_ge_u32 s[%d:%d], v3, v7" % (20 + 2 * r, 21 + 2 * r))
    a("v_mov_b32 v6, 0xff800000")
    SB = 16

    def S(t, kt):
        return SB + (t * 18 + kt) * 4
    stamp(a)
    vloads = []
    for b in range(18):
        g = ["@vm:v", "buffer_load_dwordx4 %s, v5, s[4:7], s16 offen offset:%d" % (ar(72 + b * 4), (b % 4) * 1024)]
        if b % 4 == 3:
            g.append("s_add_u32 s16, s16, 4096")
        vloads.append(g)
    mf = []
    for kt in range(18):
        first = True
        for t in range(2):
            if (t == 0 and kt == 17) or (t == 1 and kt == 0):
                continue
            pre = "@vmwait:k%d\n" % kt if first else ""
            first = False
            mf.append(pre + "v_mfma_f32_16x16x32_bf16 %s, %s, %s, 0" % (vr(S(t, kt)), ar(kt * 4), vr(QB + 4 * t)))
    interleave(a, mf, vloads)
    stamp(a)
    a("s_nop 7")
    a("s_lshl_b32 s17, s11, 1")
    a("s_sub_i32 s17, 16, s17")
    a("s_cmp_le_i32 s17, 0")
    a("s_cbranch_scc1 L_attn_noneg")
    for kt in range(16):
        l = a.newlabel("attn_neg")
        a("s_cmp_le_i32 s17, %d" % kt)
        a("s_cbranch_scc1 %s" % l)
        for t in range(2):
            if (t == 1 and kt == 0):
                continue
            for r in range(4):
                a("v_mov_b32 v%d, v6" % (S(t, kt) + r))
        a.label(l)
    a.label("L_attn_noneg")
    for t in range(2):
        for r in range(4):
            a("v_cndmask_b32 v%d, v%d, v6, s[%d:%d]" % (S(t, t) + r, S(t, t) + r, 20 + 2 * r, 21 + 2 * r))
            a("v_cndmask_b32 v%d, v6, v%d, s[%d:%d]" % (S(t, t + 16) + r, S(t, t + 16) + r, 20 + 2 * r, 21 + 2 * r))
    MX = 176
    regs = [[S(t, kt) + r for kt in range(t, t + 17) for r in range(4)] for t in range(2)]
    for t in range(2):
        a("v_max_f32 v%d, v%d, v%d" % (MX + t, regs[t][0], regs[t][1]))
    for k in range(2, 68, 2):
        for t in range(2):
            a("v_max3_f32 v%d, v%d, v%d, v%d" % (MX + t, MX + t, regs[t][k], regs[t][k + 1]))
    reduce_g_multi(a, [MX, MX + 1], [178, 179], "v_max_f32")
    c = (28 ** -0.5) * math.log2(math.e)
    chex = struct.unpack("<I", struct.pack("<f", c))[0]
    a("s_mov_b32 s28, 0x%08x" % chex)
    a("v_mov_b32 v188, s28")
    a("v_mov_b32 v189, s28")
    for t in range(2):
        a("v_mul_f32 v%d, -v188, v%d" % (180 + 2 * t, MX + t))
        a("v_mul_f32 v%d, -v188, v%d" % (181 + 2 * t, MX + t))
    for t in range(2):
        for kt in range(t, t + 17):
            for r in range(0, 4, 2):
                a("v_pk_fma_f32 %s, %s, v[188:189], %s" % (vr(S(t, kt) + r, 2), vr(S(t, kt) + r, 2), vr(180 + 2 * t, 2)))
            for r in range(4):
                a("v_exp_f32 v%d, v%d" % (S(t, kt) + r, S(t, kt) + r))
    a("s_nop 0")
    for t in range(2):
        for s in range(9):
            d = S(t, 2 * s)
            s0 = S(t, 2 * s)
            s1 = S(t, 2 * s + 1)
            if t == 1 and s == 0:
                a("v_cvt_pk_bf16_f32 v%d, v%d, v%d" % (d + 2, s1, s1 + 1))
                a("v_cvt_pk_bf16_f32 v%d, v%d, v%d" % (d + 3, s1 + 2, s1 + 3))
                a("v_mov_b32 v%d, 0" % d)
                a("v_mov_b32 v%d, 0" % (d + 1))
            elif t == 0 and s == 8:
                a("v_cvt_pk_bf16_f32 v%d, v%d, v%d" % (d, s0, s0 + 1))
                a("v_cvt_pk_bf16_f32 v%d, v%d, v%d" % (d + 1, s0 + 2, s0 + 3))
                a("v_mov_b32 v%d, 0" % (d + 2))
                a("v_mov_b32 v%d, 0" % (d + 3))
            else:
                a("v_cvt_pk_bf16_f32 v%d, v%d, v%d" % (d, s0, s0 + 1))
                a("v_cvt_pk_bf16_f32 v%d, v%d, v%d" % (d + 1, s0 + 2, s0 + 3))
                a("v_cvt_pk_bf16_f32 v%d, v%d, v%d" % (d + 2, s1, s1 + 1))
                a("v_cvt_pk_bf16_f32 v%d, v%d, v%d" % (d + 3, s1 + 2, s1 + 3))
    stamp(a)
    a("s_waitcnt vmcnt(0)")
    a("s_nop 1")
    OB = 160
    for s in range(9):
        for t in range(2):
            for dt in range(2):
                o = OB + (t * 2 + dt) * 4
                a("v_mfma_f32_16x16x32_bf16 %s, %s, %s, %s" % (vr(o), ar(72 + (s * 2 + dt) * 4), vr(S(t, 2 * s)), "0" if s == 0 else vr(o)))
    a("v_add_u32 v7, 48, v3")
    a("v_lshlrev_b32 v7, 2, v7")
    a("s_nop 7")
    for t in range(2):
        a("ds_bpermute_b32 v%d, v7, v%d" % (MX + t, OB + (t * 2 + 1) * 4))
    a("s_waitcnt lgkmcnt(0)")
    for t in range(2):
        a("v_rcp_f32 v%d, v%d" % (MX + t, MX + t))
    a("s_nop 0")
    a("s_lshl_b32 s12, s11, 15")
    a("s_lshl_b32 s13, s10, 10")
    a("s_add_u32 s12, s12, s13")
    a("s_add_u32 s12, s12, 0x%x" % OF)
    a("s_add_u32 s13, s12, 16384")
    for t in range(2):
        for dt in range(2):
            o = OB + (t * 2 + dt) * 4
            for r in range(4):
                a("v_mul_f32 v%d, v%d, v%d" % (o + r, MX + t, o + r))
        d = 180 + t * 4
        for dt in range(2):
            o = OB + (t * 2 + dt) * 4
            a("v_cvt_pk_bf16_f32 v%d, v%d, v%d" % (d + 2 * dt, o, o + 1))
            a("v_cvt_pk_bf16_f32 v%d, v%d, v%d" % (d + 2 * dt + 1, o + 2, o + 3))
        a("buffer_store_dwordx4 %s, v5, s[4:7], s%d offen" % (vr(d), 12 + t))
    stamp_flush(a, 4)
    a.label("L_attn_end")
    a("s_endpgm")
    kernel_desc(name, 192 + 144, 40, 192)


def gen_gemm_res(a, name, KS, AOFF, WOFF, final):
    kernel_begin(a, name)
    end = "L_%s_end" % name
    a("s_cmp_ge_u32 s2, 224")
    a("s_cbranch_scc1 %s" % end)
    stamp(a)
    ws_srd(a, 4)
    if final:
        a("s_load_dwordx2 s[32:33], s[0:1], 56")
        a("s_mov_b32 s34, %d" % OUT_BYTES)
        a("s_mov_b32 s35, 0x20000")
    lane_setup(a)
    a("s_and_b32 s8, s2, 7")
    a("s_lshr_b32 s9, s2, 3")
    a("s_mul_i32 s10, s9, 37")
    a("s_lshr_b32 s10, s10, 8")
    a("s_mul_i32 s11, s10, 7")
    a("s_sub_u32 s11, s9, s11")
    a("s_lshl_b32 s8, s8, 2")
    a("s_add_u32 s10, s10, s8")
    KW = KS // 4
    a("s_mul_i32 s12, s10, %d" % (4 * KS * 1024))
    a("s_mul_i32 s13, s3, %d" % (KW * 1024))
    a("s_add_u32 s12, s12, s13")
    a("s_add_u32 s12, s12, 0x%x" % AOFF)
    for m in range(1, 4):
        a("s_add_u32 s%d, s12, %d" % (12 + m, m * KS * 1024))
    a("s_mul_i32 s16, s11, %d" % (4 * KS * 1024))
    a("s_mul_i32 s20, s3, %d" % (KW * 1024))
    a("s_add_u32 s16, s16, s20")
    a("s_add_u32 s16, s16, 0x%x" % WOFF)
    for n in range(1, 4):
        a("s_add_u32 s%d, s16, %d" % (16 + n, n * KS * 1024))
    a("s_lshl_b32 s20, s10, 2")
    a("s_add_u32 s20, s20, s3")
    a("s_mul_i32 s21, s20, %d" % (14 * 1024))
    a("s_lshl_b32 s22, s11, 11")
    a("s_add_u32 s21, s21, s22")
    a("s_add_u32 s21, s21, 0x%x" % XF)
    a("s_mov_b32 s24, %s" % ONES_BF)
    a("s_waitcnt lgkmcnt(0)")
    RX = 8
    DEPTH = min(KW, 6)
    ACC = 16

    def slot(ks):
        return (ks % DEPTH) * 32

    def loads(ks):
        g = []
        for m in range(4):
            g.append(["@vm:k%d" % ks, "buffer_load_dwordx4 %s, v5, s[4:7], s%d offen offset:%d" % (ar(slot(ks) + m * 4), 12 + m, (ks % 4) * 1024)])
            g.append(["@vm:k%d" % ks, "buffer_load_dwordx4 %s, v5, s[4:7], s%d offen offset:%d" % (ar(slot(ks) + 16 + m * 4), 16 + m, (ks % 4) * 1024)])
        if ks % 4 == 3:
            g[-1] = g[-1] + ["s_add_u32 s%d, s%d, 4096" % (12 + k, 12 + k) for k in range(8)]
        return g
    PD = min(KW, 4)
    for ks in range(PD):
        for g in loads(ks):
            for l in g:
                a(l)
    a("@vm:rx")
    a("buffer_load_dwordx4 %s, v5, s[4:7], s21 offen" % vr(RX))
    a("@vm:rx")
    a("buffer_load_dwordx4 %s, v5, s[4:7], s21 offen offset:1024" % vr(RX + 4))
    stamp(a)
    nxt = PD
    for ks in range(KW):
        if ks == 1:
            stamp(a)
        mf = []
        for m in range(4):
            for n in range(4):
                acc = ACC + (m * 4 + n) * 4
                mf.append("v_mfma_f32_16x16x32_bf16 %s, %s, %s, %s" % (vr(acc), ar(slot(ks) + 16 + n * 4), ar(slot(ks) + m * 4), "0" if ks == 0 else vr(acc)))
        a("@vmwait:k%d" % ks)
        side = []
        while nxt < KW and nxt - DEPTH < ks and len(side) < 16 and nxt <= ks + DEPTH - 1:
            side += loads(nxt)
            nxt += 1
        interleave(a, mf, side)
    stamp(a)
    a("s_nop 7")
    a("s_lshl_b32 s22, s3, 14")
    a("v_add_u32 v6, s22, v5")
    for m in range(4):
        for n in range(4):
            a("ds_write_b128 v6, %s offset:%d" % (vr(ACC + (m * 4 + n) * 4), (m * 4 + n) * 1024))
    a("s_waitcnt lgkmcnt(0)")
    a("s_barrier")
    a("s_lshl_b32 s22, s3, 12")
    a("v_add_u32 v6, s22, v5")
    RB = 80
    for w in range(4):
        for n in range(4):
            a("ds_read_b128 %s, v6 offset:%d" % (vr(RB + (w * 4 + n) * 4), w * 16384 + n * 1024))
    a("s_waitcnt lgkmcnt(8)")
    for k in range(0, 16, 2):
        a("v_pk_add_f32 %s, %s, %s" % (vr(RB + k, 2), vr(RB + k, 2), vr(RB + 16 + k, 2)))
    a("s_waitcnt lgkmcnt(0)")
    for k in range(0, 16, 2):
        a("v_pk_add_f32 %s, %s, %s" % (vr(RB + 32 + k, 2), vr(RB + 32 + k, 2), vr(RB + 48 + k, 2)))
    for k in range(0, 16, 2):
        a("v_pk_add_f32 %s, %s, %s" % (vr(RB + k, 2), vr(RB + k, 2), vr(RB + 32 + k, 2)))
    a("@vmwait:rx")
    T = 16
    for q in range(8):
        a("v_cvt_pk_bf16_f32 v%d, v%d, v%d" % (T + q, RB + 2 * q, RB + 2 * q + 1))
    for q in range(8):
        a("v_lshlrev_b32 v%d, 16, v%d" % (32 + 2 * q, T + q))
        a("v_and_b32 v%d, 0xffff0000, v%d" % (33 + 2 * q, T + q))
        a("v_lshlrev_b32 v%d, 16, v%d" % (48 + 2 * q, RX + q))
        a("v_and_b32 v%d, 0xffff0000, v%d" % (49 + 2 * q, RX + q))
    for q in range(8):
        a("v_pk_add_f32 %s, %s, %s" % (vr(32 + 2 * q, 2), vr(32 + 2 * q, 2), vr(48 + 2 * q, 2)))
    for q in range(8):
        a("v_cvt_pk_bf16_f32 v%d, v%d, v%d" % (24 + q, 32 + 2 * q, 33 + 2 * q))
    if not final:
        a("buffer_store_dwordx4 %s, v5, s[4:7], s21 offen" % vr(24))
        a("buffer_store_dwordx4 %s, v5, s[4:7], s21 offen offset:1024" % vr(28))
        a("v_mov_b32 v64, 0")
        a("v_mov_b32 v65, 0")
        a("v_mov_b32 v66, 0")
        a("v_mov_b32 v67, 0")
        for q in range(0, 8, 2):
            a("v_dot2c_f32_bf16 v64, s24, v%d" % (24 + q))
            a("v_dot2c_f32_bf16 v65, v%d, v%d" % (24 + q, 24 + q))
            a("v_dot2c_f32_bf16 v66, s24, v%d" % (25 + q))
            a("v_dot2c_f32_bf16 v67, v%d, v%d" % (25 + q, 25 + q))
        a("s_lshl_b32 s22, s20, 7")
        a("s_lshl_b32 s23, s11, 14")
        a("s_add_u32 s22, s22, s23")
        a("s_add_u32 s22, s22, 0x%x" % STP)
        a("v_lshlrev_b32 v6, 3, v3")
        a("v_pk_add_f32 v[64:65], v[64:65], v[66:67]")
        reduce_g_multi(a, [64, 65], [66, 67])
        a("buffer_store_dwordx2 v[64:65], v6, s[4:7], s22 offen")
    else:
        a("s_lshl_b32 s22, s20, 4")
        a("v_add_u32 v6, s22, v3")
        a("v_mul_u32_u24 v6, 896, v6")
        a("v_lshlrev_b32 v7, 3, v4")
        a("v_add_u32 v6, v6, v7")
        a("s_lshl_b32 s22, s11, 7")
        for p in range(2):
            a("buffer_store_dwordx2 %s, v6, s[32:35], s22 offen offset:%d" % (vr(24 + p * 4, 2), p * 64))
            a("buffer_store_dwordx2 %s, v6, s[32:35], s22 offen offset:%d" % (vr(26 + p * 4, 2), p * 64 + 32))
    stamp_flush(a, 4)
    a.label(end)
    a("s_endpgm")
    kernel_desc(name, 144 + DEPTH * 32, 40, 144)


def gen_gateup(a):
    name = "gateup_kernel"
    kernel_begin(a, name)
    a("s_cmp_ge_u32 s2, 224")
    a("s_cbranch_scc1 L_gu_end")
    stamp(a)
    ws_srd(a, 4)
    lane_setup(a)
    a("s_and_b32 s8, s2, 7")
    a("s_lshr_b32 s9, s2, 3")
    a("s_mul_i32 s10, s9, 37")
    a("s_lshr_b32 s10, s10, 8")
    a("s_mul_i32 s11, s10, 7")
    a("s_sub_u32 s11, s9, s11")
    a("s_lshr_b32 s12, s8, 1")
    a("s_lshl_b32 s12, s12, 2")
    a("s_add_u32 s10, s10, s12")
    a("s_and_b32 s12, s8, 1")
    a("s_mul_i32 s12, s12, 7")
    a("s_add_u32 s11, s11, s12")
    a("s_lshl_b32 s12, s10, 3")
    a("s_lshl_b32 s13, s3, 1")
    a("s_add_u32 s12, s12, s13")
    a("s_mul_i32 s14, s12, %d" % (14 * 1024))
    a("s_add_u32 s15, s14, %d" % (14 * 1024))
    a("s_lshl_b32 s16, s3, 11")
    a("s_lshl_b32 s17, s11, 2")
    a("s_add_u32 s17, s17, s3")
    a("s_mul_i32 s18, s17, %d" % (56 * 1024))
    a("s_add_u32 s18, s18, 0x%x" % WGUF)
    a("s_mov_b32 s21, %s" % INV448)
    a("s_mov_b32 s22, %s" % EPS)
    a("v_add_u32 v7, 0x10000, v5")
    a("s_waitcnt lgkmcnt(0)")
    CSB = 200
    ST = 192
    SL = 248
    stats_load(a, 12, SL, 40, "st")
    a("s_lshl_b32 s23, s17, 7")
    a("s_add_u32 s24, s23, 0x%x" % CS_U)
    a("s_add_u32 s23, s23, 0x%x" % CS_G)
    a("v_lshlrev_b32 v6, 4, v4")
    for mat in range(2):
        for p in range(2):
            a("@vm:cs")
            a("buffer_load_dwordx4 %s, v6, s[4:7], s%d offen offset:%d" % (vr(CSB + (mat * 2 + p) * 4), 23 + mat, p * 64))

    def loads(ks):
        g = []
        for m in range(2):
            g.append(["s_add_u32 s19, s16, %d" % ((ks * 8 + m) * 1024), "s_mov_b32 m0, s19", "s_add_u32 s25, s%d, %d" % (14 + m, ks * 1024),
                      "@vm:k%d" % ks, "buffer_load_dwordx4 v5, s[4:7], s25 offen lds"])
        for f in range(4):
            g.append(["@vm:k%d" % ks, "buffer_load_dwordx4 %s, v5, s[4:7], s18 offen offset:%d" % (ar((ks * 4 + f) * 4), f * 1024)])
        g[-1] = g[-1] + ["s_add_u32 s18, s18, 4096"]
        return g
    PD = 4
    for ks in range(PD):
        for g in loads(ks):
            for l in g:
                a(l)
    stamp(a)
    a("@vmwait:st")
    stats_finish(a, SL, ST, [42, 43, 44, 45], 21, 22)
    a("s_lshl_b32 s23, s3, 8")
    a("s_add_u32 s23, s23, 114688")
    a("v_lshlrev_b32 v6, 3, v3")
    a("v_add_u32 v46, s23, v6")
    a("v_mov_b32 v48, v%d" % ST)
    a("v_mov_b32 v49, v%d" % (ST + 2))
    a("v_mov_b32 v50, v%d" % (ST + 1))
    a("v_mov_b32 v51, v%d" % (ST + 3))
    a("ds_write_b64 v46, v[48:49]")
    a("ds_write_b64 v46, v[50:51] offset:128")
    a("s_waitcnt lgkmcnt(0)")
    a("@vmwait:k0")
    a("s_barrier")
    stamp(a)
    ACC = 64
    ABUF = [8, 216]

    def lda(ks):
        g = []
        for mt in range(8):
            off = (ks * 8 + mt) * 1024
            if off < 0x10000:
                g.append(["@lg:a%d_%d" % (ks, mt), "ds_read_b128 %s, v5 offset:%d" % (vr(ABUF[ks & 1] + mt * 4), off)])
            else:
                g.append(["@lg:a%d_%d" % (ks, mt), "ds_read_b128 %s, v7 offset:%d" % (vr(ABUF[ks & 1] + mt * 4), off - 0x10000)])
        return g
    for g in lda(0):
        for l in g:
            a(l)
    for ks in range(14):
        ab = ABUF[ks & 1]
        mf = []
        for mt in range(8):
            for f in range(4):
                acc = ACC + (mt * 4 + f) * 4
                pre = "@lgwait:a%d_%d\n" % (ks, mt) if f == 0 else ""
                mf.append(pre + "v_mfma_f32_16x16x32_bf16 %s, %s, %s, %s" % (vr(acc), ar((ks * 4 + f) * 4), vr(ab + mt * 4), "0" if ks == 0 else vr(acc)))
        side1 = loads(ks + PD) if ks + PD < 14 else []
        interleave(a, mf[:16], side1)
        if ks + 1 < 14:
            a("@vmwait:k%d" % (ks + 1))
            a("s_barrier")
        side2 = lda(ks + 1) if ks + 1 < 14 else []
        interleave(a, mf[16:], side2)
    stamp(a)
    a("v_add_u32 v8, 114688, v6")
    for mt in range(8):
        a("ds_read_b64 %s, v8 offset:%d" % (vr(16 + mt * 2, 2), mt * 128))
    a("s_lshl_b32 s12, s10, 3")
    a("s_mul_i32 s12, s12, %d" % (56 * 1024))
    a("s_lshl_b32 s13, s17, 10")
    a("s_add_u32 s12, s12, s13")
    a("s_add_u32 s12, s12, 0x%x" % HF)
    a("s_waitcnt lgkmcnt(0)")
    for mt in range(8):
        nm = 16 + mt * 2
        rs = nm + 1
        a("v_mul_f32 v%d, v%d, v%d" % (rs, rs, rs))
        for p in range(2):
            g = ACC + (mt * 4 + p) * 4
            u = ACC + (mt * 4 + 2 + p) * 4
            for r in range(0, 4, 2):
                a("v_pk_fma_f32 %s, %s, %s, %s op_sel_hi:[0,1,1]" % (vr(g + r, 2), vr(nm, 2), vr(CSB + p * 4 + r, 2), vr(g + r, 2)))
                a("v_pk_fma_f32 %s, %s, %s, %s op_sel_hi:[0,1,1]" % (vr(u + r, 2), vr(nm, 2), vr(CSB + 8 + p * 4 + r, 2), vr(u + r, 2)))
        for p in range(2):
            g = ACC + (mt * 4 + p) * 4
            u = ACC + (mt * 4 + 2 + p) * 4
            for r in range(0, 4, 2):
                a("v_pk_mul_f32 %s, %s, %s" % (vr(g + r, 2), vr(g + r, 2), vr(u + r, 2)))
        for p in range(2):
            g = ACC + (mt * 4 + p) * 4
            for r in range(0, 4, 2):
                a("v_pk_mul_f32 %s, %s, %s op_sel:[0,1] op_sel_hi:[1,1]" % (vr(g + r, 2), vr(g + r, 2), vr(nm, 2)))
        d = 32 + (mt & 3) * 4
        for p in range(2):
            g = ACC + (mt * 4 + p) * 4
            a("v_cvt_pk_bf16_f32 v%d, v%d, v%d" % (d + 2 * p, g, g + 1))
            a("v_cvt_pk_bf16_f32 v%d, v%d, v%d" % (d + 2 * p + 1, g + 2, g + 3))
        a("buffer_store_dwordx4 %s, v5, s[4:7], s12 offen" % vr(d))
        a("s_add_u32 s12, s12, %d" % (56 * 1024))
    stamp_flush(a, 4)
    a.label("L_gu_end")
    a("s_endpgm")
    kernel_desc(name, 256 + 224, 40, 256)


def main():
    global STAMP
    if len(sys.argv) > 2 and sys.argv[2] == "stamp":
        STAMP = True
    a = Asm()
    gen_prep(a)
    gen_qkv(a)
    gen_attn(a)
    gen_gemm_res(a, "wo_kernel", 16, OF, WOF, False)
    gen_gateup(a)
    gen_gemm_res(a, "down_kernel", 56, HF, WDF, False)
    gen_gemm_res(a, "downf_kernel", 56, HF, WDF, True)
    hdr = open("cdna_kernels/%s.s.ref" % NAME).read().split("\n")
    head = [l for l in hdr if l.startswith(";") and "@launch" not in l and "Override launch" not in l and "grid=ceil" not in l]
    launches = [
        ("prep_kernel", 588, 256, 256),
        ("qkv_kernel", 256, 256, 86016),
        ("attn_kernel", 256, 256, 0),
        ("wo_kernel", 224, 256, 65536),
        ("gateup_kernel", 224, 256, 114688 + 1024),
        ("down_kernel", 224, 256, 65536),
        ("qkv_kernel", 256, 256, 86016),
        ("attn_kernel", 256, 256, 0),
        ("wo_kernel", 224, 256, 65536),
        ("gateup_kernel", 224, 256, 114688 + 1024),
        ("downf_kernel", 224, 256, 65536),
    ]
    out = "\n".join(head) + "\n"
    for (k, g, b, l) in launches:
        out += "; @launch kernel=%s grid=(%d,1,1) block=(%d,1,1) lds=%d\n" % (k, g, b, l)
    out += '.amdgcn_target "amdgcn-amd-amdhsa--gfx950"\n.text\n'
    out += a.text()
    out += '.section .rodata,"a"\n'
    for kd in KDS:
        out += ".p2align 6\n" + kd + "\n"
    path = sys.argv[1] if len(sys.argv) > 1 else "cdna_kernels/%s.s" % NAME
    open(path, "w").write(out)
    print("wrote", path, len(out))


if __name__ == "__main__":
    main()
```

```python
import sys, struct, math

NAME = "interleave_layers__sliding_block__glu_gated_bilinear__prompt"

def XF(n): return n * 0x200000
WQKVF = 0x800000
WOF = 0xA00000
WGUF = 0xB00000
WDF = 0xF00000
CS = 0x1100000
CS_G = CS + 8192
CS_U = CS + 16384
def STP(n): return 0x1110000 + n * 0x20000
SYNC = 0x1200000
def QF(L): return 0x1400000 + L * 0x1000000
def KF(L): return QF(L) + 0x200000
def VF(L): return QF(L) + 0x400000
def OF(L): return QF(L) + 0x600000
def HF(L): return QF(L) + 0x800000
WS_SIZE = 0x4000000
SC = " sc0 sc1"

OUT_BYTES = 2048 * 448 * 2
INV448 = "0x3b124925"
EPS = "0x3727c5ac"
ONES_BF = "0x3f803f80"


class Asm:
    def __init__(self):
        self.lines = []
        self.uid = 0
        self.vm = []
        self.lg = []

    def reset_counters(self):
        self.vm = []
        self.lg = []

    def __call__(self, s):
        for l in s.strip("\n").split("\n"):
            l = l.strip()
            if l.startswith("@vm:"):
                self.vm.append(l[4:])
            elif l.startswith("@lg:"):
                self.lg.append(l[4:])
            elif l.startswith("@vmwait:"):
                tag = l[8:]
                idx = max(i for i, t in enumerate(self.vm) if t == tag)
                n = len(self.vm) - 1 - idx
                self.lines.append("    s_waitcnt vmcnt(%d)" % min(n, 63))
            elif l.startswith("@lgwait:"):
                tag = l[8:]
                idx = max(i for i, t in enumerate(self.lg) if t == tag)
                n = len(self.lg) - 1 - idx
                self.lines.append("    s_waitcnt lgkmcnt(%d)" % min(n, 15))
            else:
                self.lines.append("    " + l)

    def label(self, l):
        self.lines.append(l + ":")

    def raw(self, s):
        self.lines.append(s)

    def newlabel(self, base):
        self.uid += 1
        return "L_%s_%d" % (base, self.uid)

    def text(self):
        return "\n".join(self.lines) + "\n"


def vr(b, n=4, k="v"):
    return "%s[%d:%d]" % (k, b, b + n - 1)


def ar(b, n=4):
    return vr(b, n, "a")


def kernel_begin(a, name):
    a.raw(".globl %s" % name)
    a.raw(".p2align 8")
    a.raw(".type %s,@function" % name)
    a.label(name)
    a.reset_counters()


KDS = []
STAMP = False
STAMP_BASE = 0x3800000
_stamp_n = [0]
_kern_idx = [0]


def kernel_desc(name, vgpr, sgpr, accum):
    if STAMP:
        sgpr = 96
    KDS.append(""".amdhsa_kernel %s
  .amdhsa_next_free_vgpr %d
  .amdhsa_next_free_sgpr %d
  .amdhsa_accum_offset %d
  .amdhsa_group_segment_fixed_size 0
  .amdhsa_kernarg_size 80
  .amdhsa_user_sgpr_count 2
  .amdhsa_user_sgpr_kernarg_segment_ptr 1
  .amdhsa_system_sgpr_workgroup_id_x 1
.end_amdhsa_kernel""" % (name, vgpr, sgpr, accum))


def stamp(a, clk=False):
    if not STAMP:
        return
    k = _stamp_n[0]
    _stamp_n[0] += 1
    a("%s s[%d:%d]" % ("s_memtime" if clk else "s_memrealtime", 60 + 2 * k, 61 + 2 * k))


def stamp_flush(a, srd):
    if not STAMP:
        return
    n = _stamp_n[0]
    a("s_memrealtime s[%d:%d]" % (60 + 2 * n, 61 + 2 * n))
    n += 1
    a("s_waitcnt lgkmcnt(0) vmcnt(0)")
    a("s_lshl_b32 s58, s2, 2")
    a("s_add_u32 s58, s58, s3")
    a("s_add_u32 s58, s58, %d" % (_kern_idx[0] * 4096))
    a("s_lshl_b32 s58, s58, 6")
    a("s_add_u32 s58, s58, 0x%x" % STAMP_BASE)
    a("v_mov_b32 v1, 0")
    for k in range(n):
        a("v_mov_b32 v2, s%d" % (60 + 2 * k))
        a("buffer_store_dword v2, v1, s[%d:%d], s58 offen offset:%d" % (srd, srd + 3, 4 * k))
    _stamp_n[0] = 0
    _kern_idx[0] += 1


def ws_srd(a, s):
    a("s_load_dwordx2 s[%d:%d], s[0:1], 72" % (s, s + 1))
    a("s_mov_b32 s%d, 0x%x" % (s + 2, WS_SIZE))
    a("s_mov_b32 s%d, 0x20000" % (s + 3))


def lane_setup(a):
    a("v_lshrrev_b32 v1, 6, v0")
    a("v_and_b32 v2, 63, v0")
    a("v_and_b32 v3, 15, v0")
    a("v_bfe_u32 v4, v0, 4, 2")
    a("v_readfirstlane_b32 s3, v1")
    a("v_lshlrev_b32 v5, 4, v2")


def reduce_g(a, x, t, op="v_add_f32"):
    a("v_mov_b32 v%d, v%d" % (t, x))
    a("s_nop 1")
    a("v_permlane16_swap_b32 v%d, v%d" % (x, t))
    a("%s v%d, v%d, v%d" % (op, x, x, t))
    a("v_mov_b32 v%d, v%d" % (t, x))
    a("s_nop 1")
    a("v_permlane32_swap_b32 v%d, v%d" % (x, t))
    a("%s v%d, v%d, v%d" % (op, x, x, t))


def reduce_g_multi(a, xs, ts, op="v_add_f32"):
    for perm in ("v_permlane16_swap_b32", "v_permlane32_swap_b32"):
        for x, t in zip(xs, ts):
            a("v_mov_b32 v%d, v%d" % (t, x))
        if len(xs) < 3:
            a("s_nop 1")
        for x, t in zip(xs, ts):
            a("%s v%d, v%d" % (perm, x, t))
        for x, t in zip(xs, ts):
            a("%s v%d, v%d, v%d" % (op, x, x, t))


def ln_stats(a, s1, s2, t, sinv, seps):
    a("v_mul_f32 v%d, s%d, v%d" % (s1, sinv, s1))
    a("v_mul_f32 v%d, s%d, v%d" % (s2, sinv, s2))
    a("v_fma_f32 v%d, -v%d, v%d, v%d" % (s2, s1, s1, s2))
    a("v_max_f32 v%d, 0, v%d" % (s2, s2))
    a("v_cvt_pk_bf16_f32 v%d, v%d, v%d" % (t, s1, s2))
    a("v_lshlrev_b32 v%d, 16, v%d" % (s1, t))
    a("v_xor_b32 v%d, 0x80000000, v%d" % (s1, s1))
    a("v_and_b32 v%d, 0xffff0000, v%d" % (s2, t))
    a("v_add_f32 v%d, s%d, v%d" % (s2, seps, s2))
    a("v_cvt_pk_bf16_f32 v%d, v%d, v%d" % (s2, s2, s2))
    a("v_and_b32 v%d, 0xffff0000, v%d" % (s2, s2))
    a("v_sqrt_f32 v%d, v%d" % (s2, s2))
    a("s_nop 0")
    a("v_cvt_pk_bf16_f32 v%d, v%d, v%d" % (s2, s2, s2))
    a("v_and_b32 v%d, 0xffff0000, v%d" % (s2, s2))
    a("v_rcp_f32 v%d, v%d" % (s2, s2))
    a("s_nop 0")


def interleave(a, main, side, start=0, end=None):
    n = len(main)
    if end is None:
        end = n
    span = max(end - start, 1)
    k = len(side)
    pos = [start + (i * span) // k for i in range(k)] if k else []
    j = 0
    for i, m in enumerate(main):
        while j < k and pos[j] <= i:
            for l in side[j]:
                a(l)
            j += 1
        a(m)
    while j < k:
        for l in side[j]:
            a(l)
        j += 1


def stats_load(a, smt, vdst, vtmp, tag, stp):
    a("v_lshlrev_b32 v%d, 14, v4" % vtmp)
    a("v_lshl_add_u32 v%d, v3, 3, v%d" % (vtmp, vtmp))
    a("v_add_u32 v%d, 0x10000, v%d" % (vtmp + 1, vtmp))
    a("v_cmp_gt_u32 vcc, 3, v4")
    a("v_mov_b32 v%d, 0x40000000" % (vdst))
    a("s_lshl_b32 s30, s%d, 7" % smt)
    a("s_add_u32 s30, s30, 0x%x" % stp)
    a("v_cndmask_b32 v%d, v%d, v%d, vcc" % (vtmp + 1, vdst, vtmp + 1))
    for m in range(2):
        a("@vm:" + tag)
        a("buffer_load_dwordx2 %s, v%d, s[4:7], s30 offen offset:%d" % (vr(vdst + m * 4, 2), vtmp, m * 128) + SC)
        a("@vm:" + tag)
        a("buffer_load_dwordx2 %s, v%d, s[4:7], s30 offen offset:%d" % (vr(vdst + m * 4 + 2, 2), vtmp + 1, m * 128) + SC)


def stats_finish(a, vsrc, ST, tmps, sinv, seps):
    for m in range(2):
        a("v_add_f32 v%d, v%d, v%d" % (ST + m, vsrc + m * 4, vsrc + m * 4 + 2))
        a("v_add_f32 v%d, v%d, v%d" % (ST + 2 + m, vsrc + m * 4 + 1, vsrc + m * 4 + 3))
    reduce_g_multi(a, [ST, ST + 1, ST + 2, ST + 3], tmps)
    for m in range(2):
        ln_stats(a, ST + m, ST + 2 + m, tmps[0], sinv, seps)


def gen_prep(a):
    name = "prep_kernel"
    kernel_begin(a, name)
    a("s_cmp_ge_u32 s2, 588")
    a("s_cbranch_scc1 L_prep_end2")
    stamp(a)
    a("s_load_dwordx16 s[8:23], s[0:1], 0")
    a("s_load_dwordx2 s[28:29], s[0:1], 72")
    lane_setup(a)
    a("s_mov_b32 s30, 0x%x" % WS_SIZE)
    a("s_mov_b32 s31, 0x20000")
    a("s_mov_b32 s7, 0x20000")
    a("s_waitcnt lgkmcnt(0)")
    a("s_cmp_ge_u32 s2, 460")
    a("s_cbranch_scc1 L_prep_x")
    a("s_cmp_ge_u32 s2, 432")
    a("s_cbranch_scc1 L_prep_wo")
    a("s_cmp_ge_u32 s2, 320")
    a("s_cbranch_scc1 L_prep_wd")
    a("s_cmp_ge_u32 s2, 96")
    a("s_cbranch_scc1 L_prep_gu")
    a("v_mov_b32 v16, 0")
    a("v_mov_b32 v17, 0")
    a("v_mov_b32 v18, 0")
    a("v_mov_b32 v19, 0")
    a("s_lshl_b32 s40, s2, 10")
    a("s_add_u32 s40, s40, 0x%x" % SYNC)
    a("buffer_store_dwordx4 v[16:19], v5, s[28:31], s40 offen")
    a("s_mul_i32 s40, s2, 43")
    a("s_lshr_b32 s40, s40, 8")
    a("s_mul_i32 s41, s40, 6")
    a("s_sub_u32 s41, s2, s41")
    a("s_mov_b32 s4, s10")
    a("s_mov_b32 s5, s11")
    a("s_mov_b32 s6, %d" % (448 * 1344 * 2))
    a("s_mov_b32 s32, 2688")
    a("s_mov_b32 s33, %d" % (32 * 2688))
    a("s_mul_i32 s34, s40, %d" % (14 * 6 * 1024))
    a("s_lshl_b32 s42, s41, 10")
    a("s_add_u32 s34, s34, s42")
    a("s_add_u32 s34, s34, 0x%x" % WQKVF)
    a("s_mov_b32 s35, %d" % (6 * 1024))
    a("s_mov_b32 s36, 14")
    a("s_lshl_b32 s37, s2, 6")
    a("s_add_u32 s37, s37, 0x%x" % CS)
    a("s_mov_b32 s38, 0")
    a("s_lshr_b32 s42, s41, 1")
    a("s_mul_i32 s42, s42, 448")
    a("s_mul_i32 s43, s40, 28")
    a("s_add_u32 s42, s42, s43")
    a("s_and_b32 s43, s41, 1")
    a("s_lshl_b32 s43, s43, 4")
    a("v_add_u32 v6, s43, v3")
    a("v_add_u32 v7, s42, v6")
    a("v_lshlrev_b32 v7, 1, v7")
    a("v_mul_u32_u24 v8, %d, v4" % (4 * 2688))
    a("v_add_u32 v7, v7, v8")
    a("v_add_u32 v9, %d, v7" % (16 * 2688))
    a("v_cmp_gt_u32 vcc, 28, v6")
    a("v_mov_b32 v10, 0x40000000")
    a("s_nop 1")
    a("v_cndmask_b32 v7, v10, v7, vcc")
    a("v_cndmask_b32 v9, v10, v9, vcc")
    a("s_branch L_prep_gather")
    a.label("L_prep_gu")
    a("s_sub_u32 s40, s2, 96")
    a("s_cmp_ge_u32 s40, 112")
    a("s_cselect_b32 s41, 1, 0")
    a("s_cselect_b32 s4, s18, s16")
    a("s_cselect_b32 s5, s19, s17")
    a("s_mul_i32 s42, s41, 112")
    a("s_sub_u32 s40, s40, s42")
    a("s_mov_b32 s6, %d" % (448 * 1792 * 2))
    a("s_mov_b32 s32, 3584")
    a("s_mov_b32 s33, %d" % (32 * 3584))
    a("s_lshr_b32 s42, s40, 1")
    a("s_mul_i32 s34, s42, %d" % (14 * 4 * 1024))
    a("s_lshl_b32 s42, s41, 1")
    a("s_and_b32 s43, s40, 1")
    a("s_add_u32 s42, s42, s43")
    a("s_lshl_b32 s42, s42, 10")
    a("s_add_u32 s34, s34, s42")
    a("s_add_u32 s34, s34, 0x%x" % WGUF)
    a("s_mov_b32 s35, 4096")
    a("s_mov_b32 s36, 14")
    a("s_lshl_b32 s37, s40, 6")
    a("s_lshl_b32 s42, s41, 13")
    a("s_add_u32 s37, s37, s42")
    a("s_add_u32 s37, s37, 0x%x" % CS_G)
    a("s_mov_b32 s38, 0")
    a("s_lshl_b32 s42, s40, 4")
    a("v_add_u32 v7, s42, v3")
    a("v_lshlrev_b32 v7, 1, v7")
    a("v_mul_u32_u24 v8, %d, v4" % (4 * 3584))
    a("v_add_u32 v7, v7, v8")
    a("v_add_u32 v9, %d, v7" % (16 * 3584))
    a("s_branch L_prep_gather")
    a.label("L_prep_wd")
    a("s_sub_u32 s40, s2, 320")
    a("s_and_b32 s41, s40, 3")
    a("s_lshr_b32 s40, s40, 2")
    a("s_mov_b32 s4, s20")
    a("s_mov_b32 s5, s21")
    a("s_mov_b32 s6, %d" % (1792 * 448 * 2))
    a("s_mov_b32 s32, 896")
    a("s_mov_b32 s33, %d" % (32 * 896))
    a("s_mul_i32 s34, s40, %d" % (56 * 1024))
    a("s_mul_i32 s42, s41, %d" % (14 * 1024))
    a("s_add_u32 s34, s34, s42")
    a("s_add_u32 s34, s34, 0x%x" % WDF)
    a("s_mov_b32 s35, 1024")
    a("s_mov_b32 s36, 14")
    a("s_mov_b32 s37, -1")
    a("s_mul_i32 s38, s41, %d" % (14 * 32 * 896))
    a("s_lshl_b32 s42, s40, 4")
    a("v_add_u32 v7, s42, v3")
    a("v_lshlrev_b32 v7, 1, v7")
    a("v_mul_u32_u24 v8, %d, v4" % (4 * 896))
    a("v_add_u32 v7, v7, v8")
    a("v_add_u32 v9, %d, v7" % (16 * 896))
    a("s_branch L_prep_gather")
    a.label("L_prep_wo")
    a("s_sub_u32 s40, s2, 432")
    a("s_mov_b32 s4, s12")
    a("s_mov_b32 s5, s13")
    a("s_mov_b32 s6, %d" % (448 * 448 * 2))
    a("s_mov_b32 s32, 896")
    a("s_mov_b32 s33, %d" % (28 * 896))
    a("s_lshl_b32 s34, s40, 14")
    a("s_add_u32 s34, s34, 0x%x" % WOF)
    a("s_mov_b32 s35, 1024")
    a("s_mov_b32 s36, 16")
    a("s_mov_b32 s37, -1")
    a("s_mov_b32 s38, 0")
    a("s_lshl_b32 s42, s40, 4")
    a("v_add_u32 v7, s42, v3")
    a("v_lshlrev_b32 v7, 1, v7")
    a("v_mul_u32_u24 v8, %d, v4" % (4 * 896))
    a("v_add_u32 v7, v7, v8")
    a("v_add_u32 v9, %d, v7" % (16 * 896))
    a("v_cmp_gt_u32 vcc, 3, v4")
    a("v_mov_b32 v10, 0x40000000")
    a("s_nop 1")
    a("v_cndmask_b32 v9, v10, v9, vcc")
    a("s_branch L_prep_gather")
    a.label("L_prep_gather")
    a("v_mov_b32 v60, 0")
    for q in range(4):
        lskip = a.newlabel("prep_skipld")
        a("s_add_u32 s44, s3, %d" % (4 * q))
        a("s_cmp_ge_u32 s44, s36")
        a("s_cbranch_scc1 %s" % lskip)
        a("s_mul_i32 s45, s44, s33")
        a("s_add_u32 s45, s45, s38")
        a("s_add_u32 s46, s45, s32")
        a("s_add_u32 s47, s46, s32")
        a("s_add_u32 s48, s47, s32")
        b = 16 + q * 8
        for j in range(4):
            a("buffer_load_ushort v%d, v7, s[4:7], s%d offen" % (b + j, 45 + j))
        for j in range(4):
            a("buffer_load_ushort v%d, v9, s[4:7], s%d offen" % (b + 4 + j, 45 + j))
        a.label(lskip)
    a("s_waitcnt vmcnt(0)")
    for q in range(4):
        lskip = a.newlabel("prep_skipst")
        a("s_add_u32 s44, s3, %d" % (4 * q))
        a("s_cmp_ge_u32 s44, s36")
        a("s_cbranch_scc1 %s" % lskip)
        b = 16 + q * 8
        d = 64 + q * 4
        for j in range(4):
            a("v_lshl_or_b32 v%d, v%d, 16, v%d" % (d + j, b + 2 * j + 1, b + 2 * j))
        for j in range(8):
            a("v_lshlrev_b32 v%d, 16, v%d" % (b + j, b + j))
        for j in range(8):
            a("v_add_f32 v60, v60, v%d" % (b + j))
        a("s_mul_i32 s45, s44, s35")
        a("s_add_u32 s45, s45, s34")
        a("buffer_store_dwordx4 %s, v5, s[28:31], s45 offen" % vr(d) + SC)
        a.label(lskip)
    a("s_cmp_eq_u32 s37, -1")
    a("s_cbranch_scc1 L_prep_end")
    reduce_g(a, 60, 61)
    a("s_lshl_b32 s44, s3, 6")
    a("v_lshlrev_b32 v62, 2, v3")
    a("v_add_u32 v63, s44, v62")
    a("ds_write_b32 v63, v60")
    a("s_waitcnt lgkmcnt(0)")
    a("s_barrier")
    a("s_cmp_lg_u32 s3, 0")
    a("s_cbranch_scc1 L_prep_end")
    a("ds_read_b32 v16, v62")
    a("ds_read_b32 v17, v62 offset:64")
    a("ds_read_b32 v18, v62 offset:128")
    a("ds_read_b32 v19, v62 offset:192")
    a("s_waitcnt lgkmcnt(0)")
    a("v_add_f32 v16, v16, v17")
    a("v_add_f32 v18, v18, v19")
    a("v_add_f32 v16, v16, v18")
    a("buffer_store_dword v16, v62, s[28:31], s37 offen")
    a("s_branch L_prep_end")
    a.label("L_prep_x")
    a("s_sub_u32 s40, s2, 460")
    a("s_mov_b32 s4, s8")
    a("s_mov_b32 s5, s9")
    a("s_mov_b32 s6, %d" % OUT_BYTES)
    a("s_mov_b32 s39, %s" % ONES_BF)
    a("s_lshl_b32 s42, s40, 4")
    a("v_add_u32 v7, s42, v3")
    a("v_lshlrev_b32 v11, 3, v7")
    a("v_mul_u32_u24 v7, 896, v7")
    a("v_lshlrev_b32 v8, 3, v4")
    a("v_add_u32 v7, v7, v8")
    a("s_mul_i32 s34, s40, %d" % (14 * 1024))
    a("s_add_u32 s34, s34, 0x%x" % XF(0))
    a("v_mov_b32 v60, 0")
    a("v_mov_b32 v61, 0")
    for q in range(4):
        lskip = a.newlabel("prep_xld")
        a("s_add_u32 s44, s3, %d" % (4 * q))
        a("s_cmp_ge_u32 s44, 14")
        a("s_cbranch_scc1 %s" % lskip)
        a("s_lshl_b32 s45, s44, 6")
        b = 16 + q * 4
        a("buffer_load_dwordx2 %s, v7, s[4:7], s45 offen" % vr(b, 2))
        a("buffer_load_dwordx2 %s, v7, s[4:7], s45 offen offset:32" % vr(b + 2, 2))
        a.label(lskip)
    a("s_waitcnt vmcnt(0)")
    for q in range(4):
        lskip = a.newlabel("prep_xst")
        a("s_add_u32 s44, s3, %d" % (4 * q))
        a("s_cmp_ge_u32 s44, 14")
        a("s_cbranch_scc1 %s" % lskip)
        a("s_lshl_b32 s45, s44, 10")
        a("s_add_u32 s45, s45, s34")
        b = 16 + q * 4
        a("buffer_store_dwordx4 %s, v5, s[28:31], s45 offen" % vr(b) + SC)
        for k in range(4):
            a("v_dot2c_f32_bf16 v60, s39, v%d" % (b + k))
            a("v_dot2c_f32_bf16 v61, v%d, v%d" % (b + k, b + k))
        a.label(lskip)
    a("s_nop 3")
    reduce_g_multi(a, [60, 61], [62, 63])
    a("s_lshl_b32 s45, s3, 14")
    a("s_add_u32 s45, s45, 0x%x" % STP(0))
    a("buffer_store_dwordx2 v[60:61], v11, s[28:31], s45 offen")
    a("s_cmp_ge_u32 s3, 3")
    a("s_cbranch_scc1 L_prep_end")
    a("v_mov_b32 v62, 0")
    a("v_mov_b32 v63, 0")
    a("s_add_u32 s45, s45, 0x10000")
    a("buffer_store_dwordx2 v[62:63], v11, s[28:31], s45 offen")
    a.label("L_prep_end")
    stamp_flush(a, 28)
    a.label("L_prep_end2")
    a("s_endpgm")
    kernel_desc(name, 80, 56, 80)


def sync_signal(a, off_lines):
    for l in off_lines:
        a(l)
    a("s_waitcnt vmcnt(0)")
    a("s_barrier")
    l = a.newlabel("sig")
    a("s_cmp_lg_u32 s3, 0")
    a("s_cbranch_scc1 %s" % l)
    a("s_mov_b64 exec, 1")
    a("v_mov_b32 v254, 1")
    a("v_mov_b32 v255, 0")
    a("buffer_atomic_add v254, v255, s[4:7], s41 offen sc1")
    a("s_mov_b64 exec, -1")
    a.label(l)


def sync_wait(a, off_lines, n, barrier=True):
    for l in off_lines:
        a(l)
    ld = a.newlabel("wdone")
    ll = a.newlabel("wloop")
    a("s_cmp_lg_u32 s3, 0")
    a("s_cbranch_scc1 %s" % ld)
    a("s_mov_b32 s42, 0x40000")
    a("v_mov_b32 v255, 0")
    a.label(ll)
    a("buffer_load_dword v254, v255, s[4:7], s41 offen sc0 sc1")
    a("s_waitcnt vmcnt(0)")
    a("v_readfirstlane_b32 s43, v254")
    a("s_cmp_ge_u32 s43, %d" % n)
    a("s_cbranch_scc1 %s" % ld)
    a("s_sub_u32 s42, s42, 1")
    a("s_cmp_eq_u32 s42, 0")
    a("s_cbranch_scc1 %s" % ld)
    a("s_sleep 1")
    a("s_branch %s" % ll)
    a.label(ld)
    if barrier:
        a("s_barrier")


def bar_off(L, k):
    return ["s_lshl_b32 s41, s36, 9", "s_add_u32 s41, s41, 0x%x" % (SYNC + (L * 16 * 4 + k) * 128)]


def kv_off(L, drb):
    return ["s_sub_u32 s41, s36, %d" % drb, "s_lshl_b32 s41, s41, 4", "s_add_u32 s41, s41, s37", "s_lshl_b32 s41, s41, 7",
            "s_add_u32 s41, s41, 0x%x" % (SYNC + 0x8000 + L * 16 * 16 * 128)]


def phase_qkv(a, L):
    a.reset_counters()
    stamp(a)
    xin = XF(2 * L)
    a("s_lshl_b32 s12, s36, 3")
    a("s_lshl_b32 s13, s3, 1")
    a("s_add_u32 s12, s12, s13")
    a("s_mul_i32 s14, s12, %d" % (14 * 1024))
    a("s_add_u32 s14, s14, 0x%x" % xin)
    a("s_add_u32 s15, s14, %d" % (14 * 1024))
    a("s_mul_i32 s16, s37, %d" % (84 * 1024))
    a("s_add_u32 s16, s16, 0x%x" % WQKVF)
    a("s_mul_i32 s17, s3, %d" % (3 * 1024))
    a("s_add_u32 s16, s16, s17")
    a("v_add_u32 v8, 61440, v5")
    AB = 16
    CSB = 228
    ST = 224
    SL = 244
    a("s_mul_i32 s25, s37, 384")
    a("s_add_u32 s25, s25, 0x%x" % CS)
    a("v_lshlrev_b32 v10, 4, v4")
    a("v_lshlrev_b32 v11, 2, v3")
    for nt in range(4):
        a("@vm:cs")
        a("buffer_load_dwordx4 %s, v10, s[4:7], s25 offen offset:%d" % (vr(CSB + nt * 4), nt * 64))
    CSV = 252
    for nt in range(4, 6):
        a("@vm:cs")
        a("buffer_load_dword v%d, v11, s[4:7], s25 offen offset:%d" % (CSV + nt - 4, nt * 64))

    def w_loads(c):
        g = []
        first = ["s_add_u32 s18, s17, %d" % (c * 12 * 1024), "s_mov_b32 m0, s18", "s_add_u32 s19, s16, %d" % (c * 12 * 1024)]
        for j in range(3):
            g.append((first if j == 0 else []) + ["@vm:c%d" % c, "buffer_load_dwordx4 v5, s[4:7], s19 offen offset:%d lds" % (j * 1024)])
        return g

    def a_loads(c):
        g = []
        pre = ["s_add_u32 s23, s14, %d" % (c * 2048), "s_add_u32 s24, s15, %d" % (c * 2048)]
        for k2 in range(2):
            ks = 2 * c + k2
            for m in range(2):
                g.append((pre if (k2 == 0 and m == 0) else []) + ["@vm:c%d" % c,
                         "buffer_load_dwordx4 %s, v5, s[4:7], s%d offen offset:%d" % (vr(AB + (m * 14 + ks) * 4), 23 + m, k2 * 1024) + SC])
        return g
    for c in range(7):
        for g in w_loads(c):
            for l in g:
                a(l)
    if L > 0:
        sync_wait(a, bar_off(L - 1, 3), 14)
    stamp(a)
    stats_load(a, 12, SL, 6, "st", STP(2 * L))
    PD = 4
    for c in range(PD):
        for g in a_loads(c):
            for l in g:
                a(l)
    a("@vmwait:st")
    stats_finish(a, SL, ST, [12, 13, 14, 15], 38, 39)
    a("@vmwait:c0")
    a("s_barrier")
    stamp(a)
    ACC = 128
    BB = 176

    def ldb(ks):
        return [["@lg:b%d_%d" % (ks, nt), "ds_read_b128 %s, v%d offset:%d" % (vr(BB + (ks & 1) * 24 + nt * 4), 5 if ks < 10 else 8,
                 ((ks * 6 + nt) * 1024) - (0 if ks < 10 else 61440))] for nt in range(6)]
    for g in ldb(0):
        for l in g:
            a(l)
    for ks in range(14):
        mf = []
        for m in range(2):
            af = AB + (m * 14 + ks) * 4
            for nt in range(6):
                bf = BB + (ks & 1) * 24 + nt * 4
                acc = ACC + (m * 6 + nt) * 4
                c = "0" if ks == 0 else vr(acc)
                pre = "@lgwait:b%d_%d\n" % (ks, nt) if m == 0 else ""
                if nt < 4:
                    mf.append(pre + "v_mfma_f32_16x16x32_bf16 %s, %s, %s, %s" % (vr(acc), vr(bf), vr(af), c))
                else:
                    mf.append(pre + "v_mfma_f32_16x16x32_bf16 %s, %s, %s, %s" % (vr(acc), vr(af), vr(bf), c))
        c = ks // 2
        if ks % 2 == 0 and ks > 0:
            a("@vmwait:c%d" % c)
        side1 = a_loads(c + PD) if (ks % 2 == 0 and c + PD < 7) else []
        interleave(a, mf[:6], side1)
        side2 = ldb(ks + 1) if ks + 1 < 14 else []
        interleave(a, mf[6:], side2)
    stamp(a)
    a("v_lshlrev_b32 v10, 4, v4")
    for r in range(4):
        a("v_add_u32 v%d, %d, v10" % (11 + r, 4 * r))
    for m in range(2):
        for r in range(4):
            a("ds_bpermute_b32 v%d, v%d, v%d" % (16 + m * 4 + r, 11 + r, ST + m))
            a("ds_bpermute_b32 v%d, v%d, v%d" % (24 + m * 4 + r, 11 + r, ST + 2 + m))
    a("s_lshl_b32 s26, s37, 17")
    a("s_lshl_b32 s27, s12, 10")
    a("s_add_u32 s26, s26, s27")
    a("s_add_u32 s28, s26, 0x%x" % VF(L))
    a("s_add_u32 s27, s26, 0x%x" % KF(L))
    a("s_add_u32 s26, s26, 0x%x" % QF(L))
    for m in range(2):
        for qk in (1, 0):
            for p in range(2):
                nt = qk * 2 + p
                acc = ACC + (m * 6 + nt) * 4
                for r in range(0, 4, 2):
                    a("v_pk_fma_f32 %s, %s, %s, %s op_sel:[%d,0,0] op_sel_hi:[%d,1,1]" % (vr(acc + r, 2), vr(ST, 2), vr(CSB + nt * 4 + r, 2), vr(acc + r, 2), m, m))
                for r in range(0, 4, 2):
                    a("v_pk_mul_f32 %s, %s, %s op_sel:[%d,0] op_sel_hi:[%d,1]" % (vr(acc + r, 2), vr(ST + 2, 2), vr(acc + r, 2), m, m))
            d = 32 + (m * 2 + qk) * 4
            for p in range(2):
                acc = ACC + (m * 6 + qk * 2 + p) * 4
                a("v_cvt_pk_bf16_f32 v%d, v%d, v%d" % (d + 2 * p, acc, acc + 1))
                a("v_cvt_pk_bf16_f32 v%d, v%d, v%d" % (d + 2 * p + 1, acc + 2, acc + 3))
            a("buffer_store_dwordx4 %s, v5, s[4:7], s%d offen offset:%d" % (vr(d), 26 + qk, m * 1024) + SC)
    a("s_waitcnt lgkmcnt(0)")
    a("v_cmp_eq_u32 vcc, 12, v3")
    for dt in range(2):
        nt = 4 + dt
        for m in range(2):
            acc = ACC + (m * 6 + nt) * 4
            for r in range(4):
                a("v_fma_f32 v%d, v%d, v%d, v%d" % (acc + r, 16 + m * 4 + r, CSV + dt, acc + r))
            for r in range(0, 4, 2):
                a("v_pk_mul_f32 %s, %s, %s" % (vr(acc + r, 2), vr(24 + m * 4 + r, 2), vr(acc + r, 2)))
            if dt == 1:
                for r in range(4):
                    a("v_cndmask_b32 v%d, v%d, 1.0, vcc" % (acc + r, acc + r))
        d = 48 + dt * 4
        for m in range(2):
            acc = ACC + (m * 6 + nt) * 4
            a("v_cvt_pk_bf16_f32 v%d, v%d, v%d" % (d + 2 * m, acc, acc + 1))
            a("v_cvt_pk_bf16_f32 v%d, v%d, v%d" % (d + 2 * m + 1, acc + 2, acc + 3))
        a("buffer_store_dwordx4 %s, v5, s[4:7], s28 offen offset:%d" % (vr(d), dt * 1024) + SC)
    sync_signal(a, kv_off(L, 0))


def phase_attn(a, L):
    a.reset_counters()
    stamp(a)
    sfx = "_%d" % L
    for d in (1, 2):
        l = a.newlabel("kvskip")
        a("s_cmp_lt_u32 s36, %d" % d)
        a("s_cbranch_scc1 %s" % l)
        sync_wait(a, kv_off(L, d), 1, barrier=False)
        a.label(l)
    a("s_barrier")
    stamp(a)
    a("s_lshl_b32 s11, s36, 2")
    a("s_add_u32 s11, s11, s3")
    a("s_lshl_b32 s12, s37, 17")
    a("s_lshl_b32 s13, s11, 11")
    a("s_add_u32 s13, s12, s13")
    a("s_add_u32 s14, s13, 0x%x" % QF(L))
    a("s_add_u32 s15, s13, 0x%x" % (KF(L) - 16 * 1024))
    a("s_add_u32 s16, s12, 0x%x" % VF(L))
    a("s_sub_i32 s18, s11, 8")
    QB = 8
    for t in range(2):
        a("@vm:q")
        a("buffer_load_dwordx4 %s, v5, s[4:7], s14 offen offset:%d" % (vr(QB + 4 * t), t * 1024) + SC)
    for kt in range(18):
        a("@vm:k%d" % kt)
        a("buffer_load_dwordx4 %s, v5, s[4:7], s15 offen offset:%d" % (ar(kt * 4), (kt % 4) * 1024) + SC)
        if kt % 4 == 3:
            a("s_add_u32 s15, s15, 4096")
    a("v_lshlrev_b32 v6, 2, v4")
    for r in range(4):
        a("v_add_u32 v7, %d, v6" % r)
        a("v_cmp_ge_u32 s[%d:%d], v3, v7" % (20 + 2 * r, 21 + 2 * r))
    a("v_mov_b32 v6, 0xff800000")
    SB = 16

    def S(t, kt):
        return SB + (t * 18 + kt) * 4
    vloads = []
    for s in range(9):
        pre = ["s_add_i32 s19, s18, %d" % s, "s_max_i32 s19, s19, 0", "s_lshl_b32 s19, s19, 11", "s_add_u32 s19, s19, s16"]
        for dt in range(2):
            vloads.append((pre if dt == 0 else []) + ["@vm:v", "buffer_load_dwordx4 %s, v5, s[4:7], s19 offen offset:%d" % (ar(72 + (s * 2 + dt) * 4), dt * 1024) + SC])
    mf = []
    for kt in range(18):
        first = True
        for t in range(2):
            if (t == 0 and kt == 17) or (t == 1 and kt == 0):
                continue
            pre = "@vmwait:k%d\n" % kt if first else ""
            first = False
            mf.append(pre + "v_mfma_f32_16x16x32_bf16 %s, %s, %s, 0" % (vr(S(t, kt)), ar(kt * 4), vr(QB + 4 * t)))
    interleave(a, mf, vloads)
    stamp(a)
    a("s_nop 7")
    a("s_lshl_b32 s17, s11, 1")
    a("s_sub_i32 s17, 16, s17")
    a("s_cmp_le_i32 s17, 0")
    a("s_cbranch_scc1 L_attn_noneg" + sfx)
    for kt in range(16):
        l = a.newlabel("attn_neg")
        a("s_cmp_le_i32 s17, %d" % kt)
        a("s_cbranch_scc1 %s" % l)
        for t in range(2):
            if (t == 1 and kt == 0):
                continue
            for r in range(4):
                a("v_mov_b32 v%d, v6" % (S(t, kt) + r))
        a.label(l)
    a.label("L_attn_noneg" + sfx)
    for t in range(2):
        for r in range(4):
            a("v_cndmask_b32 v%d, v%d, v6, s[%d:%d]" % (S(t, t) + r, S(t, t) + r, 20 + 2 * r, 21 + 2 * r))
            a("v_cndmask_b32 v%d, v6, v%d, s[%d:%d]" % (S(t, t + 16) + r, S(t, t + 16) + r, 20 + 2 * r, 21 + 2 * r))
    MX = 176
    regs = [[S(t, kt) + r for kt in range(t, t + 17) for r in range(4)] for t in range(2)]
    for t in range(2):
        a("v_max_f32 v%d, v%d, v%d" % (MX + t, regs[t][0], regs[t][1]))
    for k in range(2, 68, 2):
        for t in range(2):
            a("v_max3_f32 v%d, v%d, v%d, v%d" % (MX + t, MX + t, regs[t][k], regs[t][k + 1]))
    reduce_g_multi(a, [MX, MX + 1], [178, 179], "v_max_f32")
    c = (28 ** -0.5) * math.log2(math.e)
    chex = struct.unpack("<I", struct.pack("<f", c))[0]
    a("s_mov_b32 s28, 0x%08x" % chex)
    a("v_mov_b32 v188, s28")
    a("v_mov_b32 v189, s28")
    for t in range(2):
        a("v_mul_f32 v%d, -v188, v%d" % (180 + 2 * t, MX + t))
        a("v_mul_f32 v%d, -v188, v%d" % (181 + 2 * t, MX + t))
    for t in range(2):
        for kt in range(t, t + 17):
            for r in range(0, 4, 2):
                a("v_pk_fma_f32 %s, %s, v[188:189], %s" % (vr(S(t, kt) + r, 2), vr(S(t, kt) + r, 2), vr(180 + 2 * t, 2)))
            for r in range(4):
                a("v_exp_f32 v%d, v%d" % (S(t, kt) + r, S(t, kt) + r))
    a("s_nop 0")
    for t in range(2):
        for s in range(9):
            d = S(t, 2 * s)
            s0 = S(t, 2 * s)
            s1 = S(t, 2 * s + 1)
            if t == 1 and s == 0:
                a("v_cvt_pk_bf16_f32 v%d, v%d, v%d" % (d + 2, s1, s1 + 1))
                a("v_cvt_pk_bf16_f32 v%d, v%d, v%d" % (d + 3, s1 + 2, s1 + 3))
                a("v_mov_b32 v%d, 0" % d)
                a("v_mov_b32 v%d, 0" % (d + 1))
            elif t == 0 and s == 8:
                a("v_cvt_pk_bf16_f32 v%d, v%d, v%d" % (d, s0, s0 + 1))
                a("v_cvt_pk_bf16_f32 v%d, v%d, v%d" % (d + 1, s0 + 2, s0 + 3))
                a("v_mov_b32 v%d, 0" % (d + 2))
                a("v_mov_b32 v%d, 0" % (d + 3))
            else:
                a("v_cvt_pk_bf16_f32 v%d, v%d, v%d" % (d, s0, s0 + 1))
                a("v_cvt_pk_bf16_f32 v%d, v%d, v%d" % (d + 1, s0 + 2, s0 + 3))
                a("v_cvt_pk_bf16_f32 v%d, v%d, v%d" % (d + 2, s1, s1 + 1))
                a("v_cvt_pk_bf16_f32 v%d, v%d, v%d" % (d + 3, s1 + 2, s1 + 3))
    stamp(a)
    a("s_waitcnt vmcnt(0)")
    a("s_nop 1")
    OB = 160
    for s in range(9):
        for t in range(2):
            for dt in range(2):
                o = OB + (t * 2 + dt) * 4
                a("v_mfma_f32_16x16x32_bf16 %s, %s, %s, %s" % (vr(o), ar(72 + (s * 2 + dt) * 4), vr(S(t, 2 * s)), "0" if s == 0 else vr(o)))
    a("v_add_u32 v7, 48, v3")
    a("v_lshlrev_b32 v7, 2, v7")
    a("s_nop 7")
    for t in range(2):
        a("ds_bpermute_b32 v%d, v7, v%d" % (MX + t, OB + (t * 2 + 1) * 4))
    a("s_waitcnt lgkmcnt(0)")
    for t in range(2):
        a("v_rcp_f32 v%d, v%d" % (MX + t, MX + t))
    a("s_nop 0")
    a("s_lshl_b32 s12, s11, 15")
    a("s_lshl_b32 s13, s37, 10")
    a("s_add_u32 s12, s12, s13")
    a("s_add_u32 s12, s12, 0x%x" % OF(L))
    a("s_add_u32 s13, s12, 16384")
    for t in range(2):
        for dt in range(2):
            o = OB + (t * 2 + dt) * 4
            for r in range(4):
                a("v_mul_f32 v%d, v%d, v%d" % (o + r, MX + t, o + r))
        d = 180 + t * 4
        for dt in range(2):
            o = OB + (t * 2 + dt) * 4
            a("v_cvt_pk_bf16_f32 v%d, v%d, v%d" % (d + 2 * dt, o, o + 1))
            a("v_cvt_pk_bf16_f32 v%d, v%d, v%d" % (d + 2 * dt + 1, o + 2, o + 3))
        a("buffer_store_dwordx4 %s, v5, s[4:7], s%d offen" % (vr(d), 12 + t) + SC)
    sync_signal(a, bar_off(L, 0))


def phase_gemm_res(a, L, KS, AOFF, WOFF, xin, xout, final, wait_k, wait_n, sig_k):
    a.reset_counters()
    stamp(a)
    a("s_cmp_ge_u32 s37, 7")
    a("s_cselect_b32 s10, 1, 0")
    a("s_mul_i32 s11, s10, 7")
    a("s_sub_u32 s11, s37, s11")
    a("s_lshl_b32 s8, s36, 1")
    a("s_add_u32 s10, s10, s8")
    KW = KS // 4
    a("s_mul_i32 s12, s10, %d" % (4 * KS * 1024))
    a("s_mul_i32 s13, s3, %d" % (KW * 1024))
    a("s_add_u32 s12, s12, s13")
    a("s_add_u32 s12, s12, 0x%x" % AOFF)
    for m in range(1, 4):
        a("s_add_u32 s%d, s12, %d" % (12 + m, m * KS * 1024))
    a("s_mul_i32 s16, s11, %d" % (4 * KS * 1024))
    a("s_mul_i32 s20, s3, %d" % (KW * 1024))
    a("s_add_u32 s16, s16, s20")
    a("s_add_u32 s16, s16, 0x%x" % WOFF)
    for n in range(1, 4):
        a("s_add_u32 s%d, s16, %d" % (16 + n, n * KS * 1024))
    a("s_lshl_b32 s20, s10, 2")
    a("s_add_u32 s20, s20, s3")
    a("s_mul_i32 s21, s20, %d" % (14 * 1024))
    a("s_lshl_b32 s22, s11, 11")
    a("s_add_u32 s21, s21, s22")
    a("s_add_u32 s24, s21, 0x%x" % xout)
    a("s_add_u32 s21, s21, 0x%x" % xin)
    RX = 8
    DEPTH = min(KW, 7)
    ACC = 16

    def slot(ks):
        return (ks % DEPTH) * 32

    def wl(ks):
        g = []
        for m in range(4):
            g.append(["@vm:k%d" % ks, "buffer_load_dwordx4 %s, v5, s[4:7], s%d offen offset:%d" % (ar(slot(ks) + 16 + m * 4), 16 + m, (ks % 4) * 1024)])
        if ks % 4 == 3:
            g[-1] = g[-1] + ["s_add_u32 s%d, s%d, 4096" % (16 + k, 16 + k) for k in range(4)]
        return g

    def al(ks):
        g = []
        for m in range(4):
            g.append(["@vm:k%d" % ks, "buffer_load_dwordx4 %s, v5, s[4:7], s%d offen offset:%d" % (ar(slot(ks) + m * 4), 12 + m, (ks % 4) * 1024) + SC])
        if ks % 4 == 3:
            g[-1] = g[-1] + ["s_add_u32 s%d, s%d, 4096" % (12 + k, 12 + k) for k in range(4)]
        return g
    for ks in range(DEPTH):
        for g in wl(ks):
            for l in g:
                a(l)
    a("@vm:rx")
    a("buffer_load_dwordx4 %s, v5, s[4:7], s21 offen" % vr(RX) + SC)
    a("@vm:rx")
    a("buffer_load_dwordx4 %s, v5, s[4:7], s21 offen offset:1024" % vr(RX + 4) + SC)
    sync_wait(a, bar_off(L, wait_k), wait_n)
    stamp(a)
    PD = min(KW, 4)
    for ks in range(PD):
        for g in al(ks):
            for l in g:
                a(l)
    na = PD
    nw = DEPTH
    for ks in range(KW):
        if ks == 1:
            stamp(a)
        mf = []
        for m in range(4):
            for n in range(4):
                acc = ACC + (m * 4 + n) * 4
                mf.append("v_mfma_f32_16x16x32_bf16 %s, %s, %s, %s" % (vr(acc), ar(slot(ks) + 16 + n * 4), ar(slot(ks) + m * 4), "0" if ks == 0 else vr(acc)))
        a("@vmwait:k%d" % ks)
        side = []
        while na < KW and na <= ks + DEPTH - 1 and len(side) < 8:
            side += al(na)
            na += 1
        while nw < KW and nw <= ks + DEPTH - 1:
            side += wl(nw)
            nw += 1
        interleave(a, mf, side)
    stamp(a)
    a("s_nop 7")
    a("s_lshl_b32 s22, s3, 14")
    a("v_add_u32 v6, s22, v5")
    for m in range(4):
        for n in range(4):
            a("ds_write_b128 v6, %s offset:%d" % (vr(ACC + (m * 4 + n) * 4), (m * 4 + n) * 1024))
    a("s_waitcnt lgkmcnt(0)")
    a("s_barrier")
    a("s_lshl_b32 s22, s3, 12")
    a("v_add_u32 v6, s22, v5")
    RB = 80
    for w in range(4):
        for n in range(4):
            a("ds_read_b128 %s, v6 offset:%d" % (vr(RB + (w * 4 + n) * 4), w * 16384 + n * 1024))
    a("s_waitcnt lgkmcnt(8)")
    for k in range(0, 16, 2):
        a("v_pk_add_f32 %s, %s, %s" % (vr(RB + k, 2), vr(RB + k, 2), vr(RB + 16 + k, 2)))
    a("s_waitcnt lgkmcnt(0)")
    for k in range(0, 16, 2):
        a("v_pk_add_f32 %s, %s, %s" % (vr(RB + 32 + k, 2), vr(RB + 32 + k, 2), vr(RB + 48 + k, 2)))
    for k in range(0, 16, 2):
        a("v_pk_add_f32 %s, %s, %s" % (vr(RB + k, 2), vr(RB + k, 2), vr(RB + 32 + k, 2)))
    T = 16
    for q in range(8):
        a("v_cvt_pk_bf16_f32 v%d, v%d, v%d" % (T + q, RB + 2 * q, RB + 2 * q + 1))
    for q in range(8):
        a("v_lshlrev_b32 v%d, 16, v%d" % (32 + 2 * q, T + q))
        a("v_and_b32 v%d, 0xffff0000, v%d" % (33 + 2 * q, T + q))
        a("v_lshlrev_b32 v%d, 16, v%d" % (48 + 2 * q, RX + q))
        a("v_and_b32 v%d, 0xffff0000, v%d" % (49 + 2 * q, RX + q))
    for q in range(8):
        a("v_pk_add_f32 %s, %s, %s" % (vr(32 + 2 * q, 2), vr(32 + 2 * q, 2), vr(48 + 2 * q, 2)))
    for q in range(8):
        a("v_cvt_pk_bf16_f32 v%d, v%d, v%d" % (24 + q, 32 + 2 * q, 33 + 2 * q))
    if not final:
        a("buffer_store_dwordx4 %s, v5, s[4:7], s24 offen" % vr(24) + SC)
        a("buffer_store_dwordx4 %s, v5, s[4:7], s24 offen offset:1024" % vr(28) + SC)
        a("v_mov_b32 v64, 0")
        a("v_mov_b32 v65, 0")
        a("v_mov_b32 v66, 0")
        a("v_mov_b32 v67, 0")
        for q in range(0, 8, 2):
            a("v_dot2c_f32_bf16 v64, s40, v%d" % (24 + q))
            a("v_dot2c_f32_bf16 v65, v%d, v%d" % (24 + q, 24 + q))
            a("v_dot2c_f32_bf16 v66, s40, v%d" % (25 + q))
            a("v_dot2c_f32_bf16 v67, v%d, v%d" % (25 + q, 25 + q))
        a("s_lshl_b32 s22, s20, 7")
        a("s_lshl_b32 s23, s11, 14")
        a("s_add_u32 s22, s22, s23")
        a("s_add_u32 s22, s22, 0x%x" % STP(xout // 0x200000))
        a("v_lshlrev_b32 v6, 3, v3")
        a("v_pk_add_f32 v[64:65], v[64:65], v[66:67]")
        reduce_g_multi(a, [64, 65], [66, 67])
        a("buffer_store_dwordx2 v[64:65], v6, s[4:7], s22 offen" + SC)
        sync_signal(a, bar_off(L, sig_k))
    else:
        a("s_lshl_b32 s22, s20, 4")
        a("v_add_u32 v6, s22, v3")
        a("v_mul_u32_u24 v6, 896, v6")
        a("v_lshlrev_b32 v7, 3, v4")
        a("v_add_u32 v6, v6, v7")
        a("s_lshl_b32 s22, s11, 7")
        for p in range(2):
            a("buffer_store_dwordx2 %s, v6, s[32:35], s22 offen offset:%d" % (vr(24 + p * 4, 2), p * 64))
            a("buffer_store_dwordx2 %s, v6, s[32:35], s22 offen offset:%d" % (vr(26 + p * 4, 2), p * 64 + 32))


def phase_gateup(a, L):
    a.reset_counters()
    stamp(a)
    xin = XF(2 * L + 1)
    a("s_lshl_b32 s12, s36, 3")
    a("s_lshl_b32 s13, s3, 1")
    a("s_add_u32 s12, s12, s13")
    a("s_mul_i32 s14, s12, %d" % (14 * 1024))
    a("s_add_u32 s14, s14, 0x%x" % xin)
    a("s_add_u32 s15, s14, %d" % (14 * 1024))
    a("s_lshl_b32 s16, s3, 11")
    a("s_lshl_b32 s17, s37, 2")
    a("s_add_u32 s17, s17, s3")
    a("s_mul_i32 s18, s17, %d" % (56 * 1024))
    a("s_add_u32 s18, s18, 0x%x" % WGUF)
    a("v_add_u32 v7, 0x10000, v5")
    CSB = 200
    ST = 192
    SL = 248
    a("s_lshl_b32 s23, s17, 7")
    a("s_add_u32 s24, s23, 0x%x" % CS_U)
    a("s_add_u32 s23, s23, 0x%x" % CS_G)
    a("v_lshlrev_b32 v6, 4, v4")
    for mat in range(2):
        for p in range(2):
            a("@vm:cs")
            a("buffer_load_dwordx4 %s, v6, s[4:7], s%d offen offset:%d" % (vr(CSB + (mat * 2 + p) * 4), 23 + mat, p * 64))

    def al(ks):
        g = []
        for m in range(2):
            g.append(["s_add_u32 s19, s16, %d" % ((ks * 8 + m) * 1024), "s_mov_b32 m0, s19", "s_add_u32 s25, s%d, %d" % (14 + m, ks * 1024),
                      "@vm:k%d" % ks, "buffer_load_dwordx4 v5, s[4:7], s25 offen" + SC + " lds"])
        return g

    def wl(ks):
        g = []
        for f in range(4):
            g.append(["@vm:k%d" % ks, "buffer_load_dwordx4 %s, v5, s[4:7], s18 offen offset:%d" % (ar((ks * 4 + f) * 4), f * 1024)])
        g[-1] = g[-1] + ["s_add_u32 s18, s18, 4096"]
        return g
    PW = 6
    for ks in range(PW):
        for g in wl(ks):
            for l in g:
                a(l)
    sync_wait(a, bar_off(L, 1), 14)
    stamp(a)
    stats_load(a, 12, SL, 40, "st", STP(2 * L + 1))
    PD = 6
    for ks in range(PD):
        for g in al(ks):
            for l in g:
                a(l)
    a("@vmwait:st")
    stats_finish(a, SL, ST, [42, 43, 44, 45], 38, 39)
    a("s_lshl_b32 s23, s3, 8")
    a("s_add_u32 s23, s23, 114688")
    a("v_lshlrev_b32 v6, 3, v3")
    a("v_add_u32 v46, s23, v6")
    a("v_mov_b32 v48, v%d" % ST)
    a("v_mov_b32 v49, v%d" % (ST + 2))
    a("v_mov_b32 v50, v%d" % (ST + 1))
    a("v_mov_b32 v51, v%d" % (ST + 3))
    a("ds_write_b64 v46, v[48:49]")
    a("ds_write_b64 v46, v[50:51] offset:128")
    a("s_waitcnt lgkmcnt(0)")
    a("@vmwait:k0")
    a("s_barrier")
    stamp(a)
    ACC = 64
    ABUF = [8, 216]

    def lda(ks):
        g = []
        for mt in range(8):
            off = (ks * 8 + mt) * 1024
            if off < 0x10000:
                g.append(["@lg:a%d_%d" % (ks, mt), "ds_read_b128 %s, v5 offset:%d" % (vr(ABUF[ks & 1] + mt * 4), off)])
            else:
                g.append(["@lg:a%d_%d" % (ks, mt), "ds_read_b128 %s, v7 offset:%d" % (vr(ABUF[ks & 1] + mt * 4), off - 0x10000)])
        return g
    for g in lda(0):
        for l in g:
            a(l)
    for ks in range(14):
        ab = ABUF[ks & 1]
        mf = []
        for mt in range(8):
            for f in range(4):
                acc = ACC + (mt * 4 + f) * 4
                pre = "@lgwait:a%d_%d\n" % (ks, mt) if f == 0 else ""
                mf.append(pre + "v_mfma_f32_16x16x32_bf16 %s, %s, %s, %s" % (vr(acc), ar((ks * 4 + f) * 4), vr(ab + mt * 4), "0" if ks == 0 else vr(acc)))
        side1 = (al(ks + PD) if ks + PD < 14 else []) + (wl(ks + PW) if ks + PW < 14 else [])
        interleave(a, mf[:16], side1)
        if ks + 1 < 14:
            a("@vmwait:k%d" % (ks + 1))
            a("s_barrier")
        side2 = lda(ks + 1) if ks + 1 < 14 else []
        interleave(a, mf[16:], side2)
    stamp(a)
    a("v_add_u32 v8, 114688, v6")
    for mt in range(8):
        a("ds_read_b64 %s, v8 offset:%d" % (vr(16 + mt * 2, 2), mt * 128))
    a("s_lshl_b32 s12, s36, 3")
    a("s_mul_i32 s12, s12, %d" % (56 * 1024))
    a("s_lshl_b32 s13, s17, 10")
    a("s_add_u32 s12, s12, s13")
    a("s_add_u32 s12, s12, 0x%x" % HF(L))
    a("s_waitcnt lgkmcnt(0)")
    for mt in range(8):
        nm = 16 + mt * 2
        rs = nm + 1
        a("v_mul_f32 v%d, v%d, v%d" % (rs, rs, rs))
        for p in range(2):
            g = ACC + (mt * 4 + p) * 4
            u = ACC + (mt * 4 + 2 + p) * 4
            for r in range(0, 4, 2):
                a("v_pk_fma_f32 %s, %s, %s, %s op_sel_hi:[0,1,1]" % (vr(g + r, 2), vr(nm, 2), vr(CSB + p * 4 + r, 2), vr(g + r, 2)))
                a("v_pk_fma_f32 %s, %s, %s, %s op_sel_hi:[0,1,1]" % (vr(u + r, 2), vr(nm, 2), vr(CSB + 8 + p * 4 + r, 2), vr(u + r, 2)))
        for p in range(2):
            g = ACC + (mt * 4 + p) * 4
            u = ACC + (mt * 4 + 2 + p) * 4
            for r in range(0, 4, 2):
                a("v_pk_mul_f32 %s, %s, %s" % (vr(g + r, 2), vr(g + r, 2), vr(u + r, 2)))
        for p in range(2):
            g = ACC + (mt * 4 + p) * 4
            for r in range(0, 4, 2):
                a("v_pk_mul_f32 %s, %s, %s op_sel:[0,1] op_sel_hi:[1,1]" % (vr(g + r, 2), vr(g + r, 2), vr(nm, 2)))
        d = 32 + (mt & 3) * 4
        for p in range(2):
            g = ACC + (mt * 4 + p) * 4
            a("v_cvt_pk_bf16_f32 v%d, v%d, v%d" % (d + 2 * p, g, g + 1))
            a("v_cvt_pk_bf16_f32 v%d, v%d, v%d" % (d + 2 * p + 1, g + 2, g + 3))
        a("buffer_store_dwordx4 %s, v5, s[4:7], s12 offen" % vr(d) + SC)
        a("s_add_u32 s12, s12, %d" % (56 * 1024))
    sync_signal(a, bar_off(L, 2))


def gen_mega(a):
    name = "mega_kernel"
    kernel_begin(a, name)
    a("s_cmp_ge_u32 s2, 256")
    a("s_cbranch_scc1 L_mega_end")
    ws_srd(a, 4)
    a("s_load_dwordx2 s[32:33], s[0:1], 56")
    a("s_mov_b32 s34, %d" % OUT_BYTES)
    a("s_mov_b32 s35, 0x20000")
    lane_setup(a)
    a("s_and_b32 s8, s2, 7")
    a("s_lshr_b32 s9, s2, 3")
    a("s_lshl_b32 s36, s8, 1")
    a("s_lshr_b32 s10, s9, 4")
    a("s_add_u32 s36, s36, s10")
    a("s_and_b32 s37, s9, 15")
    a("s_mov_b32 s38, %s" % INV448)
    a("s_mov_b32 s39, %s" % EPS)
    a("s_mov_b32 s40, %s" % ONES_BF)
    a("s_waitcnt lgkmcnt(0)")
    for L in range(2):
        phase_qkv(a, L)
        stamp_flush(a, 4)
        phase_attn(a, L)
        stamp_flush(a, 4)
        a("s_cmp_ge_u32 s37, 14")
        a("s_cbranch_scc1 L_mega_skip%d" % L)
        phase_gemm_res(a, L, 16, OF(L), WOF, XF(2 * L), XF(2 * L + 1), False, 0, 16, 1)
        stamp_flush(a, 4)
        phase_gateup(a, L)
        stamp_flush(a, 4)
        phase_gemm_res(a, L, 56, HF(L), WDF, XF(2 * L + 1), XF(2 * L + 2) if L == 0 else 0, L == 1, 2, 14, 3)
        stamp_flush(a, 4)
        a.label("L_mega_skip%d" % L)
    a.label("L_mega_end")
    a("s_endpgm")
    kernel_desc(name, 512, 60, 256)


def main():
    global STAMP
    if len(sys.argv) > 2 and sys.argv[2] == "stamp":
        STAMP = True
    a = Asm()
    gen_prep(a)
    gen_mega(a)
    hdr = open("cdna_kernels/%s.s.ref" % NAME).read().split("\n")
    head = [l for l in hdr if l.startswith(";") and "@launch" not in l and "Override launch" not in l and "grid=ceil" not in l]
    launches = [
        ("prep_kernel", 588, 256, 256),
        ("mega_kernel", 256, 256, 114688 + 1024),
    ]
    out = "\n".join(head) + "\n"
    for (k, g, b, l) in launches:
        out += "; @launch kernel=%s grid=(%d,1,1) block=(%d,1,1) lds=%d\n" % (k, g, b, l)
    out += '.amdgcn_target "amdgcn-amd-amdhsa--gfx950"\n.text\n'
    out += a.text()
    out += '.section .rodata,"a"\n'
    for kd in KDS:
        out += ".p2align 6\n" + kd + "\n"
    path = sys.argv[1] if len(sys.argv) > 1 else "cdna_kernels/%s.s" % NAME
    open(path, "w").write(out)
    print("wrote", path, len(out))


if __name__ == "__main__":
    main()
```

```python
import sys, struct, math

NAME = "interleave_layers__sliding_block__glu_gated_bilinear__prompt"

def XF(n): return n * 0x200000
WQKVF = 0x800000
WOF = 0xA00000
WGUF = 0xB00000
WDF = 0xF00000
CS = 0x1100000
CS_G = CS + 8192
CS_U = CS + 16384
def STP(n): return 0x1140000 + n * 0x20000
SYNC = 0x1200000
def QF(L): return 0x1400000 + L * 0x1000000
def KF(L): return QF(L) + 0x200000
def VF(L): return QF(L) + 0x400000
def OF(L): return QF(L) + 0x600000
def HF(L): return QF(L) + 0x800000
WS_SIZE = 0x4000000
SC = " sc0 sc1"

OUT_BYTES = 2048 * 448 * 2
INV448 = "0x3b124925"
EPS = "0x3727c5ac"
ONES_BF = "0x3f803f80"


class Asm:
    def __init__(self):
        self.lines = []
        self.uid = 0
        self.vm = []
        self.lg = []

    def reset_counters(self):
        self.vm = []
        self.lg = []

    def __call__(self, s):
        for l in s.strip("\n").split("\n"):
            l = l.strip()
            if l.startswith("@vm:"):
                self.vm.append(l[4:])
            elif l.startswith("@lg:"):
                self.lg.append(l[4:])
            elif l.startswith("@vmwait:"):
                tag = l[8:]
                idx = max(i for i, t in enumerate(self.vm) if t == tag)
                n = len(self.vm) - 1 - idx
                self.lines.append("    s_waitcnt vmcnt(%d)" % min(n, 63))
            elif l.startswith("@lgwait:"):
                tag = l[8:]
                idx = max(i for i, t in enumerate(self.lg) if t == tag)
                n = len(self.lg) - 1 - idx
                self.lines.append("    s_waitcnt lgkmcnt(%d)" % min(n, 15))
            else:
                self.lines.append("    " + l)

    def label(self, l):
        self.lines.append(l + ":")

    def raw(self, s):
        self.lines.append(s)

    def newlabel(self, base):
        self.uid += 1
        return "L_%s_%d" % (base, self.uid)

    def text(self):
        return "\n".join(self.lines) + "\n"


def vr(b, n=4, k="v"):
    return "%s[%d:%d]" % (k, b, b + n - 1)


def ar(b, n=4):
    return vr(b, n, "a")


def kernel_begin(a, name):
    a.raw(".globl %s" % name)
    a.raw(".p2align 8")
    a.raw(".type %s,@function" % name)
    a.label(name)
    a.reset_counters()


KDS = []
STAMP = False
STAMP_BASE = 0x3800000
_stamp_n = [0]
_kern_idx = [0]


def kernel_desc(name, vgpr, sgpr, accum):
    if STAMP:
        sgpr = 96
    KDS.append(""".amdhsa_kernel %s
  .amdhsa_next_free_vgpr %d
  .amdhsa_next_free_sgpr %d
  .amdhsa_accum_offset %d
  .amdhsa_group_segment_fixed_size 0
  .amdhsa_kernarg_size 80
  .amdhsa_user_sgpr_count 2
  .amdhsa_user_sgpr_kernarg_segment_ptr 1
  .amdhsa_system_sgpr_workgroup_id_x 1
.end_amdhsa_kernel""" % (name, vgpr, sgpr, accum))


def stamp(a, clk=False):
    if not STAMP:
        return
    k = _stamp_n[0]
    _stamp_n[0] += 1
    a("%s s[%d:%d]" % ("s_memtime" if clk else "s_memrealtime", 60 + 2 * k, 61 + 2 * k))


def stamp_flush(a, srd, wpw=4):
    if not STAMP:
        return
    n = _stamp_n[0]
    a("s_memrealtime s[%d:%d]" % (60 + 2 * n, 61 + 2 * n))
    n += 1
    a("s_waitcnt lgkmcnt(0) vmcnt(0)")
    a("s_mul_i32 s58, s2, %d" % wpw)
    a("s_add_u32 s58, s58, s3")
    a("s_add_u32 s58, s58, %d" % (_kern_idx[0] * 4096))
    a("s_lshl_b32 s58, s58, 6")
    a("s_add_u32 s58, s58, 0x%x" % STAMP_BASE)
    a("v_mov_b32 v1, 0")
    for k in range(n):
        a("v_mov_b32 v2, s%d" % (60 + 2 * k))
        a("buffer_store_dword v2, v1, s[%d:%d], s58 offen offset:%d" % (srd, srd + 3, 4 * k))
    _stamp_n[0] = 0
    _kern_idx[0] += 1


def ws_srd(a, s):
    a("s_load_dwordx2 s[%d:%d], s[0:1], 72" % (s, s + 1))
    a("s_mov_b32 s%d, 0x%x" % (s + 2, WS_SIZE))
    a("s_mov_b32 s%d, 0x20000" % (s + 3))


def lane_setup(a):
    a("v_lshrrev_b32 v1, 6, v0")
    a("v_and_b32 v2, 63, v0")
    a("v_and_b32 v3, 15, v0")
    a("v_bfe_u32 v4, v0, 4, 2")
    a("v_readfirstlane_b32 s3, v1")
    a("v_lshlrev_b32 v5, 4, v2")


def reduce_g(a, x, t, op="v_add_f32"):
    a("v_mov_b32 v%d, v%d" % (t, x))
    a("s_nop 1")
    a("v_permlane16_swap_b32 v%d, v%d" % (x, t))
    a("%s v%d, v%d, v%d" % (op, x, x, t))
    a("v_mov_b32 v%d, v%d" % (t, x))
    a("s_nop 1")
    a("v_permlane32_swap_b32 v%d, v%d" % (x, t))
    a("%s v%d, v%d, v%d" % (op, x, x, t))


def reduce_g_multi(a, xs, ts, op="v_add_f32"):
    for perm in ("v_permlane16_swap_b32", "v_permlane32_swap_b32"):
        for x, t in zip(xs, ts):
            a("v_mov_b32 v%d, v%d" % (t, x))
        if len(xs) < 3:
            a("s_nop 1")
        for x, t in zip(xs, ts):
            a("%s v%d, v%d" % (perm, x, t))
        for x, t in zip(xs, ts):
            a("%s v%d, v%d, v%d" % (op, x, x, t))


def ln_stats(a, s1, s2, t, sinv, seps):
    a("v_mul_f32 v%d, s%d, v%d" % (s1, sinv, s1))
    a("v_mul_f32 v%d, s%d, v%d" % (s2, sinv, s2))
    a("v_fma_f32 v%d, -v%d, v%d, v%d" % (s2, s1, s1, s2))
    a("v_max_f32 v%d, 0, v%d" % (s2, s2))
    a("v_cvt_pk_bf16_f32 v%d, v%d, v%d" % (t, s1, s2))
    a("v_lshlrev_b32 v%d, 16, v%d" % (s1, t))
    a("v_xor_b32 v%d, 0x80000000, v%d" % (s1, s1))
    a("v_and_b32 v%d, 0xffff0000, v%d" % (s2, t))
    a("v_add_f32 v%d, s%d, v%d" % (s2, seps, s2))
    a("v_cvt_pk_bf16_f32 v%d, v%d, v%d" % (s2, s2, s2))
    a("v_and_b32 v%d, 0xffff0000, v%d" % (s2, s2))
    a("v_sqrt_f32 v%d, v%d" % (s2, s2))
    a("s_nop 0")
    a("v_cvt_pk_bf16_f32 v%d, v%d, v%d" % (s2, s2, s2))
    a("v_and_b32 v%d, 0xffff0000, v%d" % (s2, s2))
    a("v_rcp_f32 v%d, v%d" % (s2, s2))
    a("s_nop 0")


def interleave(a, main, side, start=0, end=None):
    n = len(main)
    if end is None:
        end = n
    span = max(end - start, 1)
    k = len(side)
    pos = [start + (i * span) // k for i in range(k)] if k else []
    j = 0
    for i, m in enumerate(main):
        while j < k and pos[j] <= i:
            for l in side[j]:
                a(l)
            j += 1
        a(m)
    while j < k:
        for l in side[j]:
            a(l)
        j += 1


def stats_load(a, smt, vdst, vtmp, tag, stp):
    a("v_lshlrev_b32 v%d, 14, v4" % vtmp)
    a("v_lshl_add_u32 v%d, v3, 3, v%d" % (vtmp, vtmp))
    a("v_add_u32 v%d, 0x10000, v%d" % (vtmp + 1, vtmp))
    a("v_cmp_gt_u32 vcc, 3, v4")
    a("v_mov_b32 v%d, 0x40000000" % (vdst))
    a("s_lshl_b32 s30, s%d, 7" % smt)
    a("s_add_u32 s30, s30, 0x%x" % stp)
    a("v_cndmask_b32 v%d, v%d, v%d, vcc" % (vtmp + 1, vdst, vtmp + 1))
    for m in range(2):
        a("@vm:" + tag)
        a("buffer_load_dwordx2 %s, v%d, s[4:7], s30 offen offset:%d" % (vr(vdst + m * 4, 2), vtmp, m * 128))
        a("@vm:" + tag)
        a("buffer_load_dwordx2 %s, v%d, s[4:7], s30 offen offset:%d" % (vr(vdst + m * 4 + 2, 2), vtmp + 1, m * 128))


def stats_finish(a, vsrc, ST, tmps, sinv, seps):
    for m in range(2):
        a("v_add_f32 v%d, v%d, v%d" % (ST + m, vsrc + m * 4, vsrc + m * 4 + 2))
        a("v_add_f32 v%d, v%d, v%d" % (ST + 2 + m, vsrc + m * 4 + 1, vsrc + m * 4 + 3))
    reduce_g_multi(a, [ST, ST + 1, ST + 2, ST + 3], tmps)
    for m in range(2):
        ln_stats(a, ST + m, ST + 2 + m, tmps[0], sinv, seps)


PREP_LDS = 4 * 9216 + 2048


def gen_prep(a):
    name = "prep_kernel"
    kernel_begin(a, name)
    a("s_cmp_ge_u32 s2, 368")
    a("s_cbranch_scc1 L_prep_end2")
    stamp(a)
    a("s_load_dwordx16 s[8:23], s[0:1], 0")
    a("s_load_dwordx2 s[28:29], s[0:1], 72")
    lane_setup(a)
    a("s_mov_b32 s30, 0x%x" % WS_SIZE)
    a("s_mov_b32 s31, 0x20000")
    a("s_mov_b32 s7, 0x20000")
    a("s_mov_b32 s39, %s" % ONES_BF)
    a("v_mov_b32 v15, 0x40000000")
    a("v_lshrrev_b32 v14, 2, v3")
    a("s_lshr_b32 s55, s2, 2")
    a("s_and_b32 s53, s2, 3")
    a("s_lshl_b32 s53, s53, 2")
    a("s_add_u32 s53, s53, s3")
    a("s_waitcnt lgkmcnt(0)")
    a("s_cmp_ge_u32 s2, 240")
    a("s_cbranch_scc1 L_prep_x")
    a("s_cmp_ge_u32 s55, 56")
    a("s_cbranch_scc1 L_prep_wo")
    a("s_cmp_ge_u32 s55, 40")
    a("s_cbranch_scc1 L_prep_wd")
    a("s_cmp_ge_u32 s55, 12")
    a("s_cbranch_scc1 L_prep_gu")
    a("s_lshr_b32 s40, s55, 2")
    a("s_and_b32 s41, s55, 3")
    a("s_mov_b32 s4, s10")
    a("s_mov_b32 s5, s11")
    a("s_mov_b32 s6, %d" % (448 * 1344 * 2))
    a("s_mov_b32 s32, 2688")
    a("s_mov_b32 s33, %d" % (32 * 2688))
    a("s_mov_b32 s38, 0")
    a("s_mov_b32 s35, 6144")
    a("s_mov_b32 s36, 14")
    a("s_mov_b32 s50, %d" % (84 * 1024))
    a("s_mov_b32 s51, 1024")
    a("s_mov_b32 s52, 8")
    a("s_lshl_b32 s42, s41, 2")
    a("v_add_u32 v6, s42, v14")
    a("v_mul_u32_u24 v7, 28, v6")
    a("v_and_b32 v8, 3, v3")
    a("v_lshl_add_u32 v7, v8, 3, v7")
    a("s_mul_i32 s42, s40, 448")
    a("v_add_u32 v7, s42, v7")
    a("v_lshlrev_b32 v7, 1, v7")
    a("v_mul_u32_u24 v8, %d, v4" % (4 * 2688))
    a("v_add_u32 v7, v7, v8")
    a("v_add_u32 v9, %d, v7" % (16 * 2688))
    a("s_mul_i32 s34, s41, %d" % (4 * 84 * 1024))
    a("s_lshl_b32 s42, s40, 11")
    a("s_add_u32 s34, s34, s42")
    a("s_add_u32 s34, s34, 0x%x" % WQKVF)
    a("s_lshl_b32 s42, s41, 2")
    a("v_add_u32 v11, s42, v4")
    a("v_mul_u32_u24 v11, 384, v11")
    a("v_lshl_add_u32 v11, v3, 3, v11")
    a("s_lshl_b32 s49, s40, 7")
    a("s_add_u32 s49, s49, 0x%x" % CS)
    a("s_mov_b32 s48, 1")
    a("s_mov_b32 s37, 0")
    a("s_branch L_prep_go")
    a.label("L_prep_gu")
    a("s_sub_u32 s40, s55, 12")
    a("s_cmp_ge_u32 s40, 14")
    a("s_cselect_b32 s41, 1, 0")
    a("s_cselect_b32 s4, s18, s16")
    a("s_cselect_b32 s5, s19, s17")
    a("s_mul_i32 s42, s41, 14")
    a("s_sub_u32 s40, s40, s42")
    a("s_mov_b32 s6, %d" % (448 * 1792 * 2))
    a("s_mov_b32 s32, 3584")
    a("s_mov_b32 s33, %d" % (32 * 3584))
    a("s_mov_b32 s38, 0")
    a("s_mov_b32 s35, 4096")
    a("s_mov_b32 s36, 14")
    a("s_mov_b32 s50, %d" % (56 * 1024))
    a("s_mov_b32 s51, 1024")
    a("s_mov_b32 s52, 8")
    a("s_lshl_b32 s42, s40, 8")
    a("v_lshl_add_u32 v7, v3, 4, s42")
    a("v_mul_u32_u24 v8, %d, v4" % (4 * 3584))
    a("v_add_u32 v7, v7, v8")
    a("v_add_u32 v9, %d, v7" % (16 * 3584))
    a("s_mul_i32 s34, s40, %d" % (4 * 56 * 1024))
    a("s_lshl_b32 s42, s41, 11")
    a("s_add_u32 s34, s34, s42")
    a("s_add_u32 s34, s34, 0x%x" % WGUF)
    a("v_lshlrev_b32 v11, 3, v2")
    a("s_lshl_b32 s49, s40, 9")
    a("s_lshl_b32 s42, s41, 13")
    a("s_add_u32 s49, s49, s42")
    a("s_add_u32 s49, s49, 0x%x" % CS_G)
    a("s_mov_b32 s48, 0")
    a("s_mov_b32 s37, 0")
    a("s_branch L_prep_go")
    a.label("L_prep_wd")
    a("s_sub_u32 s40, s55, 40")
    a("s_and_b32 s41, s40, 3")
    a("s_lshr_b32 s40, s40, 2")
    a("s_mov_b32 s4, s20")
    a("s_mov_b32 s5, s21")
    a("s_mov_b32 s6, %d" % (1792 * 448 * 2))
    a("s_mov_b32 s32, 896")
    a("s_mov_b32 s33, %d" % (32 * 896))
    a("s_mul_i32 s38, s41, %d" % (14 * 32 * 896))
    a("s_mov_b32 s35, 1024")
    a("s_mov_b32 s36, 14")
    a("s_mov_b32 s50, %d" % (112 * 1024))
    a("s_mov_b32 s51, %d" % (56 * 1024))
    a("s_cmp_eq_u32 s40, 3")
    a("s_cselect_b32 s52, 4, 8")
    a("s_lshl_b32 s42, s40, 8")
    a("v_lshl_add_u32 v7, v3, 4, s42")
    a("v_mul_u32_u24 v8, %d, v4" % (4 * 896))
    a("v_add_u32 v7, v7, v8")
    a("v_add_u32 v9, %d, v7" % (16 * 896))
    a("s_mul_i32 s34, s40, %d" % (8 * 56 * 1024))
    a("s_mul_i32 s42, s41, %d" % (14 * 1024))
    a("s_add_u32 s34, s34, s42")
    a("s_add_u32 s34, s34, 0x%x" % WDF)
    a("s_mov_b32 s48, 0")
    a("s_mov_b32 s49, 0")
    a("s_mov_b32 s37, -1")
    a("v_mov_b32 v11, 0")
    a("s_branch L_prep_go")
    a.label("L_prep_wo")
    a("s_sub_u32 s40, s55, 56")
    a("s_mov_b32 s4, s12")
    a("s_mov_b32 s5, s13")
    a("s_mov_b32 s6, %d" % (448 * 448 * 2))
    a("s_mov_b32 s32, 896")
    a("s_mov_b32 s33, %d" % (28 * 896))
    a("s_mov_b32 s38, 0")
    a("s_mov_b32 s35, 1024")
    a("s_mov_b32 s36, 16")
    a("s_mov_b32 s50, %d" % (32 * 1024))
    a("s_mov_b32 s51, %d" % (16 * 1024))
    a("s_cmp_eq_u32 s40, 3")
    a("s_cselect_b32 s52, 4, 8")
    a("s_lshl_b32 s42, s40, 8")
    a("v_lshl_add_u32 v7, v3, 4, s42")
    a("v_mul_u32_u24 v8, %d, v4" % (4 * 896))
    a("v_add_u32 v7, v7, v8")
    a("v_add_u32 v9, %d, v7" % (16 * 896))
    a("v_cmp_gt_u32 vcc, 3, v4")
    a("s_lshl_b32 s34, s40, 17")
    a("s_add_u32 s34, s34, 0x%x" % WOF)
    a("s_mov_b32 s48, 0")
    a("s_mov_b32 s49, 0")
    a("s_mov_b32 s37, -1")
    a("v_mov_b32 v11, 0")
    a("v_cndmask_b32 v9, v15, v9, vcc")
    a.label("L_prep_go")
    a("v_and_b32 v8, 3, v3")
    a("v_cmp_ne_u32 s[56:57], 3, v8")
    CA = 16
    for e in range(8):
        a("v_mov_b32 v%d, 0" % (CA + e))
    a("s_cmp_ge_u32 s53, s36")
    a("s_cbranch_scc1 L_prep_cs")
    RB = 32
    a("s_mul_i32 s45, s53, s33")
    a("s_add_u32 s45, s45, s38")
    a("s_add_u32 s46, s45, s32")
    a("s_add_u32 s47, s46, s32")
    a("s_add_u32 s54, s47, s32")
    for j, sg in enumerate((45, 46, 47, 54)):
        a("buffer_load_dwordx4 %s, v7, s[4:7], s%d offen" % (vr(RB + j * 4), sg))
    for j, sg in enumerate((45, 46, 47, 54)):
        a("buffer_load_dwordx4 %s, v9, s[4:7], s%d offen" % (vr(RB + 16 + j * 4), sg))
    a("s_mul_i32 s44, s3, 9216")
    a("v_mul_u32_u24 v12, %d, v4" % (4 * 288))
    a("v_lshl_add_u32 v12, v3, 4, v12")
    a("v_add_u32 v12, s44, v12")
    a("v_lshl_add_u32 v13, v4, 2, v14")
    a("v_mul_u32_u24 v13, 288, v13")
    a("v_lshl_add_u32 v13, v8, 3, v13")
    a("v_add_u32 v13, s44, v13")
    a("s_waitcnt vmcnt(0)")
    a("s_cmp_eq_u32 s48, 0")
    a("s_cbranch_scc1 L_prep_nopad")
    for row in range(8):
        for d in (2, 3):
            r = RB + row * 4 + d
            a("v_cndmask_b32 v%d, 0, v%d, s[56:57]" % (r, r))
    a.label("L_prep_nopad")
    for j in range(4):
        a("ds_write_b128 v12, %s offset:%d" % (vr(RB + j * 4), j * 288))
        a("ds_write_b128 v12, %s offset:%d" % (vr(RB + 16 + j * 4), (16 + j) * 288))
    a("s_waitcnt lgkmcnt(0)")
    OB = 64
    for b in range(8):
        a("ds_read_b64_tr_b16 %s, v13 offset:%d" % (vr(OB + b * 4, 2), b * 32))
        a("ds_read_b64_tr_b16 %s, v13 offset:%d" % (vr(OB + b * 4 + 2, 2), b * 32 + 16 * 288))
    a("s_mul_i32 s45, s53, s35")
    a("s_add_u32 s45, s45, s34")
    a("s_waitcnt lgkmcnt(0)")
    for b in range(8):
        if b == 4:
            a("s_cmp_le_u32 s52, 4")
            a("s_cbranch_scc1 L_prep_end")
        if b & 1:
            a("s_add_u32 s46, s45, s51")
            a("buffer_store_dwordx4 %s, v5, s[28:31], s46 offen" % vr(OB + b * 4))
            a("s_add_u32 s45, s45, s50")
        else:
            a("buffer_store_dwordx4 %s, v5, s[28:31], s45 offen" % vr(OB + b * 4))
        for qq in range(4):
            a("v_dot2c_f32_bf16 v%d, s39, v%d" % (CA + b, OB + b * 4 + qq))
    a.label("L_prep_cs")
    a("s_cmp_eq_u32 s37, -1")
    a("s_cbranch_scc1 L_prep_end")
    a("s_nop 3")
    reduce_g_multi(a, [CA + e for e in range(8)], [24 + e for e in range(8)])
    a("s_lshl_b32 s44, s3, 9")
    a("s_add_u32 s44, s44, %d" % (4 * 9216))
    a("v_lshl_add_u32 v24, v3, 2, s44")
    for b in range(8):
        a("ds_write_b32 v24, v%d offset:%d" % (CA + b, b * 64))
    a("s_waitcnt lgkmcnt(0)")
    a("s_barrier")
    a("s_cmp_lg_u32 s3, 0")
    a("s_cbranch_scc1 L_prep_end")
    a("v_lshlrev_b32 v24, 3, v2")
    a("v_add_u32 v24, %d, v24" % (4 * 9216))
    for w in range(4):
        a("ds_read_b64 %s, v24 offset:%d" % (vr(32 + 2 * w, 2), w * 512))
    a("s_and_b32 s44, s2, 3")
    a("s_lshl_b32 s44, s44, 15")
    a("s_add_u32 s49, s49, s44")
    a("s_waitcnt lgkmcnt(0)")
    a("v_pk_add_f32 v[32:33], v[32:33], v[34:35]")
    a("v_pk_add_f32 v[36:37], v[36:37], v[38:39]")
    a("v_pk_add_f32 v[32:33], v[32:33], v[36:37]")
    a("buffer_store_dwordx2 v[32:33], v11, s[28:31], s49 offen")
    a("s_branch L_prep_end")
    a.label("L_prep_x")
    a("s_sub_u32 s40, s2, 240")
    a("s_cmp_ge_u32 s40, 96")
    a("s_cbranch_scc1 L_prep_x2")
    a("v_mov_b32 v16, 0")
    a("v_mov_b32 v17, 0")
    a("v_mov_b32 v18, 0")
    a("v_mov_b32 v19, 0")
    a("s_lshl_b32 s41, s40, 10")
    a("s_add_u32 s41, s41, 0x%x" % SYNC)
    a("buffer_store_dwordx4 v[16:19], v5, s[28:31], s41 offen")
    a.label("L_prep_x2")
    a("s_mov_b32 s4, s8")
    a("s_mov_b32 s5, s9")
    a("s_mov_b32 s6, %d" % OUT_BYTES)
    a("s_lshl_b32 s42, s40, 4")
    a("v_add_u32 v7, s42, v3")
    a("v_lshlrev_b32 v11, 3, v7")
    a("v_mul_u32_u24 v7, 896, v7")
    a("v_lshlrev_b32 v8, 3, v4")
    a("v_add_u32 v7, v7, v8")
    a("s_mul_i32 s34, s40, %d" % (14 * 1024))
    a("s_add_u32 s34, s34, 0x%x" % XF(0))
    a("v_mov_b32 v60, 0")
    a("v_mov_b32 v61, 0")
    for q in range(4):
        lskip = a.newlabel("prep_xld")
        a("s_add_u32 s44, s3, %d" % (4 * q))
        a("s_cmp_ge_u32 s44, 14")
        a("s_cbranch_scc1 %s" % lskip)
        a("s_lshl_b32 s45, s44, 6")
        b = 32 + q * 4
        a("buffer_load_dwordx2 %s, v7, s[4:7], s45 offen" % vr(b, 2))
        a("buffer_load_dwordx2 %s, v7, s[4:7], s45 offen offset:32" % vr(b + 2, 2))
        a.label(lskip)
    a("s_waitcnt vmcnt(0)")
    for q in range(4):
        lskip = a.newlabel("prep_xst")
        a("s_add_u32 s44, s3, %d" % (4 * q))
        a("s_cmp_ge_u32 s44, 14")
        a("s_cbranch_scc1 %s" % lskip)
        a("s_lshl_b32 s45, s44, 10")
        a("s_add_u32 s45, s45, s34")
        b = 32 + q * 4
        a("buffer_store_dwordx4 %s, v5, s[28:31], s45 offen" % vr(b))
        for k in range(4):
            a("v_dot2c_f32_bf16 v60, s39, v%d" % (b + k))
            a("v_dot2c_f32_bf16 v61, v%d, v%d" % (b + k, b + k))
        a.label(lskip)
    a("s_nop 3")
    reduce_g_multi(a, [60, 61], [62, 63])
    a("s_lshl_b32 s45, s3, 14")
    a("s_add_u32 s45, s45, 0x%x" % STP(0))
    a("buffer_store_dwordx2 v[60:61], v11, s[28:31], s45 offen")
    a("s_cmp_ge_u32 s3, 3")
    a("s_cbranch_scc1 L_prep_end")
    a("v_mov_b32 v62, 0")
    a("v_mov_b32 v63, 0")
    a("s_add_u32 s45, s45, 0x10000")
    a("buffer_store_dwordx2 v[62:63], v11, s[28:31], s45 offen")
    a.label("L_prep_end")
    stamp_flush(a, 28)
    a.label("L_prep_end2")
    a("s_endpgm")
    kernel_desc(name, 96, 60, 96)


def sync_signal(a, off_lines):
    for l in off_lines:
        a(l)
    a("s_waitcnt vmcnt(0)")
    a("s_barrier")
    l = a.newlabel("sig")
    a("s_cmp_lg_u32 s3, 0")
    a("s_cbranch_scc1 %s" % l)
    a("s_mov_b64 exec, 1")
    a("v_mov_b32 v254, 1")
    a("v_mov_b32 v255, 0")
    a("buffer_atomic_add v254, v255, s[4:7], s41 offen sc1")
    a("s_mov_b64 exec, -1")
    a.label(l)


def sync_wait(a, off_lines, n, barrier=True):
    for l in off_lines:
        a(l)
    ld = a.newlabel("wdone")
    ll = a.newlabel("wloop")
    a("s_cmp_lg_u32 s3, 0")
    a("s_cbranch_scc1 %s" % ld)
    a("s_mov_b32 s42, 0x40000")
    a("v_mov_b32 v255, 0")
    a.label(ll)
    a("buffer_load_dword v254, v255, s[4:7], s41 offen sc0 sc1")
    a("s_waitcnt vmcnt(0)")
    a("v_readfirstlane_b32 s43, v254")
    a("s_cmp_ge_u32 s43, %d" % n)
    a("s_cbranch_scc1 %s" % ld)
    a("s_sub_u32 s42, s42, 1")
    a("s_cmp_eq_u32 s42, 0")
    a("s_cbranch_scc1 %s" % ld)
    a("s_sleep 1")
    a("s_branch %s" % ll)
    a.label(ld)
    if barrier:
        a("s_barrier")


def bar_off(L, k):
    return ["s_lshl_b32 s41, s36, 9", "s_add_u32 s41, s41, 0x%x" % (SYNC + (L * 16 * 4 + k) * 128)]


def kv_off(L, drb):
    return ["s_sub_u32 s41, s36, %d" % drb, "s_lshl_b32 s41, s41, 4", "s_add_u32 s41, s41, s37", "s_lshl_b32 s41, s41, 7",
            "s_add_u32 s41, s41, 0x%x" % (SYNC + 0x8000 + L * 16 * 16 * 128)]


def phase_qkv(a, L):
    a.reset_counters()
    stamp(a)
    xin = XF(2 * L)
    a("s_lshl_b32 s12, s36, 3")
    a("s_lshl_b32 s13, s3, 1")
    a("s_add_u32 s12, s12, s13")
    a("s_mul_i32 s14, s12, %d" % (14 * 1024))
    a("s_add_u32 s14, s14, 0x%x" % xin)
    a("s_add_u32 s15, s14, %d" % (14 * 1024))
    a("s_mul_i32 s16, s37, %d" % (84 * 1024))
    a("s_add_u32 s16, s16, 0x%x" % WQKVF)
    a("s_mul_i32 s17, s3, %d" % (3 * 1024))
    a("s_add_u32 s16, s16, s17")
    a("v_add_u32 v8, 61440, v5")
    AB = 16
    CSB = 228
    ST = 224
    SL = 244
    a("s_mul_i32 s25, s37, 384")
    a("s_add_u32 s25, s25, 0x%x" % CS)
    a("v_lshlrev_b32 v10, 4, v4")
    a("v_lshlrev_b32 v11, 2, v3")
    CSV = 252
    for q in range(4):
        cb_ = CSB if q == 0 else 128 + (q - 1) * 20
        cv_ = CSV if q == 0 else 128 + (q - 1) * 20 + 16
        for nt in range(4):
            a("@vm:cs")
            a("buffer_load_dwordx4 %s, v10, s[4:7], s25 offen offset:%d" % (vr(cb_ + nt * 4), nt * 64))
        for nt in range(4, 6):
            a("@vm:cs")
            a("buffer_load_dword v%d, v11, s[4:7], s25 offen offset:%d" % (cv_ + nt - 4, nt * 64))
        a("s_add_u32 s25, s25, 0x8000")

    def w_loads(c):
        g = []
        first = ["s_add_u32 s18, s17, %d" % (c * 12 * 1024), "s_mov_b32 m0, s18", "s_add_u32 s19, s16, %d" % (c * 12 * 1024)]
        for j in range(3):
            g.append((first if j == 0 else []) + ["@vm:c%d" % c, "buffer_load_dwordx4 v5, s[4:7], s19 offen offset:%d lds" % (j * 1024)])
        return g

    def a_loads(c):
        g = []
        pre = ["s_add_u32 s23, s14, %d" % (c * 2048), "s_add_u32 s24, s15, %d" % (c * 2048)]
        for k2 in range(2):
            ks = 2 * c + k2
            for m in range(2):
                g.append((pre if (k2 == 0 and m == 0) else []) + ["@vm:c%d" % c,
                         "buffer_load_dwordx4 %s, v5, s[4:7], s%d offen offset:%d" % (vr(AB + (m * 14 + ks) * 4), 23 + m, k2 * 1024)])
        return g
    for c in range(7):
        for g in w_loads(c):
            for l in g:
                a(l)
    if L > 0:
        sync_wait(a, bar_off(L - 1, 3), 14)
    stamp(a)
    stats_load(a, 12, SL, 6, "st", STP(2 * L))
    PD = 4
    for c in range(PD):
        for g in a_loads(c):
            for l in g:
                a(l)
    a("@vmwait:st")
    stats_finish(a, SL, ST, [12, 13, 14, 15], 38, 39)
    for q in range(3):
        for k in range(0, 16, 2):
            a("v_pk_add_f32 %s, %s, %s" % (vr(CSB + k, 2), vr(CSB + k, 2), vr(128 + q * 20 + k, 2)))
        a("v_pk_add_f32 %s, %s, %s" % (vr(CSV, 2), vr(CSV, 2), vr(128 + q * 20 + 16, 2)))
    a("@vmwait:c0")
    a("s_barrier")
    stamp(a)
    ACC = 128
    BB = 176

    def ldb(ks):
        return [["@lg:b%d_%d" % (ks, nt), "ds_read_b128 %s, v%d offset:%d" % (vr(BB + (ks & 1) * 24 + nt * 4), 5 if ks < 10 else 8,
                 ((ks * 6 + nt) * 1024) - (0 if ks < 10 else 61440))] for nt in range(6)]
    for g in ldb(0):
        for l in g:
            a(l)
    for ks in range(14):
        mf = []
        for m in range(2):
            af = AB + (m * 14 + ks) * 4
            for nt in range(6):
                bf = BB + (ks & 1) * 24 + nt * 4
                acc = ACC + (m * 6 + nt) * 4
                c = "0" if ks == 0 else vr(acc)
                pre = "@lgwait:b%d_%d\n" % (ks, nt) if m == 0 else ""
                if nt < 4:
                    mf.append(pre + "v_mfma_f32_16x16x32_bf16 %s, %s, %s, %s" % (vr(acc), vr(bf), vr(af), c))
                else:
                    mf.append(pre + "v_mfma_f32_16x16x32_bf16 %s, %s, %s, %s" % (vr(acc), vr(af), vr(bf), c))
        c = ks // 2
        if ks % 2 == 0 and ks > 0:
            a("@vmwait:c%d" % c)
        side1 = a_loads(c + PD) if (ks % 2 == 0 and c + PD < 7) else []
        interleave(a, mf[:6], side1)
        side2 = ldb(ks + 1) if ks + 1 < 14 else []
        interleave(a, mf[6:], side2)
    stamp(a)
    a("v_lshlrev_b32 v10, 4, v4")
    for r in range(4):
        a("v_add_u32 v%d, %d, v10" % (11 + r, 4 * r))
    for m in range(2):
        for r in range(4):
            a("ds_bpermute_b32 v%d, v%d, v%d" % (16 + m * 4 + r, 11 + r, ST + m))
            a("ds_bpermute_b32 v%d, v%d, v%d" % (24 + m * 4 + r, 11 + r, ST + 2 + m))
    a("s_lshl_b32 s26, s37, 17")
    a("s_lshl_b32 s27, s12, 10")
    a("s_add_u32 s26, s26, s27")
    a("s_add_u32 s28, s26, 0x%x" % VF(L))
    a("s_add_u32 s27, s26, 0x%x" % KF(L))
    a("s_add_u32 s26, s26, 0x%x" % QF(L))
    for m in range(2):
        for qk in (1, 0):
            for p in range(2):
                nt = qk * 2 + p
                acc = ACC + (m * 6 + nt) * 4
                for r in range(0, 4, 2):
                    a("v_pk_fma_f32 %s, %s, %s, %s op_sel:[%d,0,0] op_sel_hi:[%d,1,1]" % (vr(acc + r, 2), vr(ST, 2), vr(CSB + nt * 4 + r, 2), vr(acc + r, 2), m, m))
                for r in range(0, 4, 2):
                    a("v_pk_mul_f32 %s, %s, %s op_sel:[%d,0] op_sel_hi:[%d,1]" % (vr(acc + r, 2), vr(ST + 2, 2), vr(acc + r, 2), m, m))
            d = 32 + (m * 2 + qk) * 4
            for p in range(2):
                acc = ACC + (m * 6 + qk * 2 + p) * 4
                a("v_cvt_pk_bf16_f32 v%d, v%d, v%d" % (d + 2 * p, acc, acc + 1))
                a("v_cvt_pk_bf16_f32 v%d, v%d, v%d" % (d + 2 * p + 1, acc + 2, acc + 3))
            a("buffer_store_dwordx4 %s, v5, s[4:7], s%d offen offset:%d" % (vr(d), 26 + qk, m * 1024) + SC)
    a("s_waitcnt lgkmcnt(0)")
    a("v_cmp_eq_u32 vcc, 12, v3")
    for dt in range(2):
        nt = 4 + dt
        for m in range(2):
            acc = ACC + (m * 6 + nt) * 4
            for r in range(4):
                a("v_fma_f32 v%d, v%d, v%d, v%d" % (acc + r, 16 + m * 4 + r, CSV + dt, acc + r))
            for r in range(0, 4, 2):
                a("v_pk_mul_f32 %s, %s, %s" % (vr(acc + r, 2), vr(24 + m * 4 + r, 2), vr(acc + r, 2)))
            if dt == 1:
                for r in range(4):
                    a("v_cndmask_b32 v%d, v%d, 1.0, vcc" % (acc + r, acc + r))
        d = 48 + dt * 4
        for m in range(2):
            acc = ACC + (m * 6 + nt) * 4
            a("v_cvt_pk_bf16_f32 v%d, v%d, v%d" % (d + 2 * m, acc, acc + 1))
            a("v_cvt_pk_bf16_f32 v%d, v%d, v%d" % (d + 2 * m + 1, acc + 2, acc + 3))
        a("buffer_store_dwordx4 %s, v5, s[4:7], s28 offen offset:%d" % (vr(d), dt * 1024) + SC)
    sync_signal(a, kv_off(L, 0))


def phase_attn(a, L):
    a.reset_counters()
    stamp(a)
    sfx = "_%d" % L
    for d in (1, 2):
        l = a.newlabel("kvskip")
        a("s_cmp_lt_u32 s36, %d" % d)
        a("s_cbranch_scc1 %s" % l)
        sync_wait(a, kv_off(L, d), 1, barrier=False)
        a.label(l)
    a("s_barrier")
    stamp(a)
    a("s_lshl_b32 s11, s36, 2")
    a("s_add_u32 s11, s11, s3")
    a("s_lshl_b32 s12, s37, 17")
    a("s_lshl_b32 s13, s11, 11")
    a("s_add_u32 s13, s12, s13")
    a("s_add_u32 s14, s13, 0x%x" % QF(L))
    a("s_add_u32 s15, s13, 0x%x" % (KF(L) - 16 * 1024))
    a("s_add_u32 s16, s12, 0x%x" % VF(L))
    a("s_sub_i32 s18, s11, 8")
    QB = 8
    for t in range(2):
        a("@vm:q")
        a("buffer_load_dwordx4 %s, v5, s[4:7], s14 offen offset:%d" % (vr(QB + 4 * t), t * 1024))
    a("s_lshl_b32 s10, s11, 1")
    a("s_sub_i32 s10, s10, 16")
    a("s_add_u32 s15, s12, 0x%x" % KF(L))
    for kt in range(18):
        a("s_add_i32 s19, s10, %d" % kt)
        a("s_max_i32 s19, s19, 0")
        a("s_lshl_b32 s19, s19, 10")
        a("s_add_u32 s19, s19, s15")
        a("@vm:k%d" % kt)
        a("buffer_load_dwordx4 %s, v5, s[4:7], s19 offen" % ar(kt * 4))
    a("v_lshlrev_b32 v6, 2, v4")
    for r in range(4):
        a("v_add_u32 v7, %d, v6" % r)
        a("v_cmp_ge_u32 s[%d:%d], v3, v7" % (20 + 2 * r, 21 + 2 * r))
    a("v_mov_b32 v6, 0xff800000")
    SB = 16

    def S(t, kt):
        return SB + (t * 18 + kt) * 4
    vloads = []
    for s in range(9):
        pre = ["s_add_i32 s19, s18, %d" % s, "s_max_i32 s19, s19, 0", "s_lshl_b32 s19, s19, 11", "s_add_u32 s19, s19, s16"]
        for dt in range(2):
            vloads.append((pre if dt == 0 else []) + ["@vm:v", "buffer_load_dwordx4 %s, v5, s[4:7], s19 offen offset:%d" % (ar(72 + (s * 2 + dt) * 4), dt * 1024)])
    mf = []
    for kt in range(18):
        first = True
        for t in range(2):
            if (t == 0 and kt == 17) or (t == 1 and kt == 0):
                continue
            pre = "@vmwait:k%d\n" % kt if first else ""
            first = False
            mf.append(pre + "v_mfma_f32_16x16x32_bf16 %s, %s, %s, 0" % (vr(S(t, kt)), ar(kt * 4), vr(QB + 4 * t)))
    interleave(a, mf, vloads)
    stamp(a)
    a("s_nop 7")
    a("s_lshl_b32 s17, s11, 1")
    a("s_sub_i32 s17, 16, s17")
    a("s_cmp_le_i32 s17, 0")
    a("s_cbranch_scc1 L_attn_noneg" + sfx)
    for kt in range(16):
        l = a.newlabel("attn_neg")
        a("s_cmp_le_i32 s17, %d" % kt)
        a("s_cbranch_scc1 %s" % l)
        for t in range(2):
            if (t == 1 and kt == 0):
                continue
            for r in range(4):
                a("v_mov_b32 v%d, v6" % (S(t, kt) + r))
        a.label(l)
    a.label("L_attn_noneg" + sfx)
    for t in range(2):
        for r in range(4):
            a("v_cndmask_b32 v%d, v%d, v6, s[%d:%d]" % (S(t, t) + r, S(t, t) + r, 20 + 2 * r, 21 + 2 * r))
            a("v_cndmask_b32 v%d, v6, v%d, s[%d:%d]" % (S(t, t + 16) + r, S(t, t + 16) + r, 20 + 2 * r, 21 + 2 * r))
    MX = 176
    regs = [[S(t, kt) + r for kt in range(t, t + 17) for r in range(4)] for t in range(2)]
    for t in range(2):
        a("v_max_f32 v%d, v%d, v%d" % (MX + t, regs[t][0], regs[t][1]))
    for k in range(2, 68, 2):
        for t in range(2):
            a("v_max3_f32 v%d, v%d, v%d, v%d" % (MX + t, MX + t, regs[t][k], regs[t][k + 1]))
    reduce_g_multi(a, [MX, MX + 1], [178, 179], "v_max_f32")
    c = (28 ** -0.5) * math.log2(math.e)
    chex = struct.unpack("<I", struct.pack("<f", c))[0]
    a("s_mov_b32 s28, 0x%08x" % chex)
    a("v_mov_b32 v188, s28")
    a("v_mov_b32 v189, s28")
    for t in range(2):
        a("v_mul_f32 v%d, -v188, v%d" % (180 + 2 * t, MX + t))
        a("v_mul_f32 v%d, -v188, v%d" % (181 + 2 * t, MX + t))
    for t in range(2):
        for kt in range(t, t + 17):
            for r in range(0, 4, 2):
                a("v_pk_fma_f32 %s, %s, v[188:189], %s" % (vr(S(t, kt) + r, 2), vr(S(t, kt) + r, 2), vr(180 + 2 * t, 2)))
            for r in range(4):
                a("v_exp_f32 v%d, v%d" % (S(t, kt) + r, S(t, kt) + r))
    a("s_nop 0")
    for t in range(2):
        for s in range(9):
            d = S(t, 2 * s)
            s0 = S(t, 2 * s)
            s1 = S(t, 2 * s + 1)
            if t == 1 and s == 0:
                a("v_cvt_pk_bf16_f32 v%d, v%d, v%d" % (d + 2, s1, s1 + 1))
                a("v_cvt_pk_bf16_f32 v%d, v%d, v%d" % (d + 3, s1 + 2, s1 + 3))
                a("v_mov_b32 v%d, 0" % d)
                a("v_mov_b32 v%d, 0" % (d + 1))
            elif t == 0 and s == 8:
                a("v_cvt_pk_bf16_f32 v%d, v%d, v%d" % (d, s0, s0 + 1))
                a("v_cvt_pk_bf16_f32 v%d, v%d, v%d" % (d + 1, s0 + 2, s0 + 3))
                a("v_mov_b32 v%d, 0" % (d + 2))
                a("v_mov_b32 v%d, 0" % (d + 3))
            else:
                a("v_cvt_pk_bf16_f32 v%d, v%d, v%d" % (d, s0, s0 + 1))
                a("v_cvt_pk_bf16_f32 v%d, v%d, v%d" % (d + 1, s0 + 2, s0 + 3))
                a("v_cvt_pk_bf16_f32 v%d, v%d, v%d" % (d + 2, s1, s1 + 1))
                a("v_cvt_pk_bf16_f32 v%d, v%d, v%d" % (d + 3, s1 + 2, s1 + 3))
    stamp(a)
    a("s_waitcnt vmcnt(0)")
    a("s_nop 1")
    OB = 160
    for s in range(9):
        for t in range(2):
            for dt in range(2):
                o = OB + (t * 2 + dt) * 4
                a("v_mfma_f32_16x16x32_bf16 %s, %s, %s, %s" % (vr(o), ar(72 + (s * 2 + dt) * 4), vr(S(t, 2 * s)), "0" if s == 0 else vr(o)))
    a("v_add_u32 v7, 48, v3")
    a("v_lshlrev_b32 v7, 2, v7")
    a("s_nop 7")
    for t in range(2):
        a("ds_bpermute_b32 v%d, v7, v%d" % (MX + t, OB + (t * 2 + 1) * 4))
    a("s_waitcnt lgkmcnt(0)")
    for t in range(2):
        a("v_rcp_f32 v%d, v%d" % (MX + t, MX + t))
    a("s_nop 0")
    a("s_lshl_b32 s12, s11, 15")
    a("s_lshl_b32 s13, s37, 10")
    a("s_add_u32 s12, s12, s13")
    a("s_add_u32 s12, s12, 0x%x" % OF(L))
    a("s_add_u32 s13, s12, 16384")
    for t in range(2):
        for dt in range(2):
            o = OB + (t * 2 + dt) * 4
            for r in range(4):
                a("v_mul_f32 v%d, v%d, v%d" % (o + r, MX + t, o + r))
        d = 180 + t * 4
        for dt in range(2):
            o = OB + (t * 2 + dt) * 4
            a("v_cvt_pk_bf16_f32 v%d, v%d, v%d" % (d + 2 * dt, o, o + 1))
            a("v_cvt_pk_bf16_f32 v%d, v%d, v%d" % (d + 2 * dt + 1, o + 2, o + 3))
        a("buffer_store_dwordx4 %s, v5, s[4:7], s%d offen" % (vr(d), 12 + t) + SC)
    sync_signal(a, bar_off(L, 0))


def phase_gemm_res(a, L, KS, AOFF, WOFF, xin, xout, final, wait_k, wait_n, sig_k):
    a.reset_counters()
    stamp(a)
    a("s_cmp_ge_u32 s37, 7")
    a("s_cselect_b32 s10, 1, 0")
    a("s_mul_i32 s11, s10, 7")
    a("s_sub_u32 s11, s37, s11")
    a("s_lshl_b32 s8, s36, 1")
    a("s_add_u32 s10, s10, s8")
    KW = KS // 4
    a("s_mul_i32 s12, s10, %d" % (4 * KS * 1024))
    a("s_mul_i32 s13, s3, %d" % (KW * 1024))
    a("s_add_u32 s12, s12, s13")
    a("s_add_u32 s12, s12, 0x%x" % AOFF)
    for m in range(1, 4):
        a("s_add_u32 s%d, s12, %d" % (12 + m, m * KS * 1024))
    a("s_mul_i32 s16, s11, %d" % (4 * KS * 1024))
    a("s_mul_i32 s20, s3, %d" % (KW * 1024))
    a("s_add_u32 s16, s16, s20")
    a("s_add_u32 s16, s16, 0x%x" % WOFF)
    for n in range(1, 4):
        a("s_add_u32 s%d, s16, %d" % (16 + n, n * KS * 1024))
    a("s_lshl_b32 s20, s10, 2")
    a("s_add_u32 s20, s20, s3")
    a("s_mul_i32 s21, s20, %d" % (14 * 1024))
    a("s_lshl_b32 s22, s11, 11")
    a("s_add_u32 s21, s21, s22")
    a("s_add_u32 s24, s21, 0x%x" % xout)
    a("s_add_u32 s21, s21, 0x%x" % xin)
    RX = 8
    DEPTH = min(KW, 7)
    ACC = 16

    def slot(ks):
        return (ks % DEPTH) * 32

    def wl(ks):
        g = []
        for m in range(4):
            g.append(["@vm:k%d" % ks, "buffer_load_dwordx4 %s, v5, s[4:7], s%d offen offset:%d" % (ar(slot(ks) + 16 + m * 4), 16 + m, (ks % 4) * 1024)])
        if ks % 4 == 3:
            g[-1] = g[-1] + ["s_add_u32 s%d, s%d, 4096" % (16 + k, 16 + k) for k in range(4)]
        return g

    def al(ks):
        g = []
        for m in range(4):
            g.append(["@vm:k%d" % ks, "buffer_load_dwordx4 %s, v5, s[4:7], s%d offen offset:%d" % (ar(slot(ks) + m * 4), 12 + m, (ks % 4) * 1024)])
        if ks % 4 == 3:
            g[-1] = g[-1] + ["s_add_u32 s%d, s%d, 4096" % (12 + k, 12 + k) for k in range(4)]
        return g
    for ks in range(DEPTH):
        for g in wl(ks):
            for l in g:
                a(l)
    a("@vm:rx")
    a("buffer_load_dwordx4 %s, v5, s[4:7], s21 offen" % vr(RX))
    a("@vm:rx")
    a("buffer_load_dwordx4 %s, v5, s[4:7], s21 offen offset:1024" % vr(RX + 4))
    sync_wait(a, bar_off(L, wait_k), wait_n)
    stamp(a)
    PD = min(KW, 4)
    for ks in range(PD):
        for g in al(ks):
            for l in g:
                a(l)
    na = PD
    nw = DEPTH
    for ks in range(KW):
        if ks == 1:
            stamp(a)
        mf = []
        for m in range(4):
            for n in range(4):
                acc = ACC + (m * 4 + n) * 4
                mf.append("v_mfma_f32_16x16x32_bf16 %s, %s, %s, %s" % (vr(acc), ar(slot(ks) + 16 + n * 4), ar(slot(ks) + m * 4), "0" if ks == 0 else vr(acc)))
        a("@vmwait:k%d" % ks)
        side = []
        while na < KW and na <= ks + DEPTH - 1 and len(side) < 8:
            side += al(na)
            na += 1
        while nw < KW and nw <= ks + DEPTH - 1:
            side += wl(nw)
            nw += 1
        interleave(a, mf, side)
    stamp(a)
    a("s_nop 7")
    a("s_lshl_b32 s22, s3, 14")
    a("v_add_u32 v6, s22, v5")
    for m in range(4):
        for n in range(4):
            a("ds_write_b128 v6, %s offset:%d" % (vr(ACC + (m * 4 + n) * 4), (m * 4 + n) * 1024))
    a("s_waitcnt lgkmcnt(0)")
    a("s_barrier")
    a("s_lshl_b32 s22, s3, 12")
    a("v_add_u32 v6, s22, v5")
    RB = 80
    for w in range(4):
        for n in range(4):
            a("ds_read_b128 %s, v6 offset:%d" % (vr(RB + (w * 4 + n) * 4), w * 16384 + n * 1024))
    a("s_waitcnt lgkmcnt(8)")
    for k in range(0, 16, 2):
        a("v_pk_add_f32 %s, %s, %s" % (vr(RB + k, 2), vr(RB + k, 2), vr(RB + 16 + k, 2)))
    a("s_waitcnt lgkmcnt(0)")
    for k in range(0, 16, 2):
        a("v_pk_add_f32 %s, %s, %s" % (vr(RB + 32 + k, 2), vr(RB + 32 + k, 2), vr(RB + 48 + k, 2)))
    for k in range(0, 16, 2):
        a("v_pk_add_f32 %s, %s, %s" % (vr(RB + k, 2), vr(RB + k, 2), vr(RB + 32 + k, 2)))
    T = 16
    for q in range(8):
        a("v_cvt_pk_bf16_f32 v%d, v%d, v%d" % (T + q, RB + 2 * q, RB + 2 * q + 1))
    for q in range(8):
        a("v_lshlrev_b32 v%d, 16, v%d" % (32 + 2 * q, T + q))
        a("v_and_b32 v%d, 0xffff0000, v%d" % (33 + 2 * q, T + q))
        a("v_lshlrev_b32 v%d, 16, v%d" % (48 + 2 * q, RX + q))
        a("v_and_b32 v%d, 0xffff0000, v%d" % (49 + 2 * q, RX + q))
    for q in range(8):
        a("v_pk_add_f32 %s, %s, %s" % (vr(32 + 2 * q, 2), vr(32 + 2 * q, 2), vr(48 + 2 * q, 2)))
    for q in range(8):
        a("v_cvt_pk_bf16_f32 v%d, v%d, v%d" % (24 + q, 32 + 2 * q, 33 + 2 * q))
    if not final:
        a("buffer_store_dwordx4 %s, v5, s[4:7], s24 offen" % vr(24) + SC)
        a("buffer_store_dwordx4 %s, v5, s[4:7], s24 offen offset:1024" % vr(28) + SC)
        a("v_mov_b32 v64, 0")
        a("v_mov_b32 v65, 0")
        a("v_mov_b32 v66, 0")
        a("v_mov_b32 v67, 0")
        for q in range(0, 8, 2):
            a("v_dot2c_f32_bf16 v64, s40, v%d" % (24 + q))
            a("v_dot2c_f32_bf16 v65, v%d, v%d" % (24 + q, 24 + q))
            a("v_dot2c_f32_bf16 v66, s40, v%d" % (25 + q))
            a("v_dot2c_f32_bf16 v67, v%d, v%d" % (25 + q, 25 + q))
        a("s_lshl_b32 s22, s20, 7")
        a("s_lshl_b32 s23, s11, 14")
        a("s_add_u32 s22, s22, s23")
        a("s_add_u32 s22, s22, 0x%x" % STP(xout // 0x200000))
        a("v_lshlrev_b32 v6, 3, v3")
        a("v_pk_add_f32 v[64:65], v[64:65], v[66:67]")
        reduce_g_multi(a, [64, 65], [66, 67])
        a("buffer_store_dwordx2 v[64:65], v6, s[4:7], s22 offen" + SC)
        sync_signal(a, bar_off(L, sig_k))
    else:
        a("s_lshl_b32 s22, s20, 4")
        a("v_add_u32 v6, s22, v3")
        a("v_mul_u32_u24 v6, 896, v6")
        a("v_lshlrev_b32 v7, 3, v4")
        a("v_add_u32 v6, v6, v7")
        a("s_lshl_b32 s22, s11, 7")
        for p in range(2):
            a("buffer_store_dwordx2 %s, v6, s[32:35], s22 offen offset:%d" % (vr(24 + p * 4, 2), p * 64))
            a("buffer_store_dwordx2 %s, v6, s[32:35], s22 offen offset:%d" % (vr(26 + p * 4, 2), p * 64 + 32))


def phase_gateup(a, L):
    a.reset_counters()
    stamp(a)
    xin = XF(2 * L + 1)
    a("s_lshl_b32 s12, s36, 3")
    a("s_lshl_b32 s13, s3, 1")
    a("s_add_u32 s12, s12, s13")
    a("s_mul_i32 s14, s12, %d" % (14 * 1024))
    a("s_add_u32 s14, s14, 0x%x" % xin)
    a("s_add_u32 s15, s14, %d" % (14 * 1024))
    a("s_lshl_b32 s16, s3, 11")
    a("s_lshl_b32 s17, s37, 2")
    a("s_add_u32 s17, s17, s3")
    a("s_mul_i32 s18, s17, %d" % (56 * 1024))
    a("s_add_u32 s18, s18, 0x%x" % WGUF)
    a("v_add_u32 v7, 0x10000, v5")
    CSB = 200
    ST = 192
    SL = 248
    a("s_lshl_b32 s23, s17, 7")
    a("s_add_u32 s24, s23, 0x%x" % CS_U)
    a("s_add_u32 s23, s23, 0x%x" % CS_G)
    a("v_lshlrev_b32 v6, 4, v4")
    for q in range(4):
        cb_ = CSB if q == 0 else 64 + (q - 1) * 16
        for mat in range(2):
            for p in range(2):
                a("@vm:cs")
                a("buffer_load_dwordx4 %s, v6, s[4:7], s%d offen offset:%d" % (vr(cb_ + (mat * 2 + p) * 4), 23 + mat, p * 64))
        a("s_add_u32 s23, s23, 0x8000")
        a("s_add_u32 s24, s24, 0x8000")

    def al(ks):
        g = []
        for m in range(2):
            g.append(["s_add_u32 s19, s16, %d" % ((ks * 8 + m) * 1024), "s_mov_b32 m0, s19", "s_add_u32 s25, s%d, %d" % (14 + m, ks * 1024),
                      "@vm:k%d" % ks, "buffer_load_dwordx4 v5, s[4:7], s25 offen" + " lds"])
        return g

    def wl(ks):
        g = []
        for f in range(4):
            g.append(["@vm:k%d" % ks, "buffer_load_dwordx4 %s, v5, s[4:7], s18 offen offset:%d" % (ar((ks * 4 + f) * 4), f * 1024)])
        g[-1] = g[-1] + ["s_add_u32 s18, s18, 4096"]
        return g
    PW = 6
    for ks in range(PW):
        for g in wl(ks):
            for l in g:
                a(l)
    sync_wait(a, bar_off(L, 1), 14)
    stamp(a)
    stats_load(a, 12, SL, 40, "st", STP(2 * L + 1))
    PD = 6
    for ks in range(PD):
        for g in al(ks):
            for l in g:
                a(l)
    a("@vmwait:st")
    stats_finish(a, SL, ST, [42, 43, 44, 45], 38, 39)
    for q in range(3):
        for k in range(0, 16, 2):
            a("v_pk_add_f32 %s, %s, %s" % (vr(CSB + k, 2), vr(CSB + k, 2), vr(64 + q * 16 + k, 2)))
    a("s_lshl_b32 s23, s3, 8")
    a("s_add_u32 s23, s23, 114688")
    a("v_lshlrev_b32 v6, 3, v3")
    a("v_add_u32 v46, s23, v6")
    a("v_mov_b32 v48, v%d" % ST)
    a("v_mov_b32 v49, v%d" % (ST + 2))
    a("v_mov_b32 v50, v%d" % (ST + 1))
    a("v_mov_b32 v51, v%d" % (ST + 3))
    a("ds_write_b64 v46, v[48:49]")
    a("ds_write_b64 v46, v[50:51] offset:128")
    a("s_waitcnt lgkmcnt(0)")
    a("@vmwait:k0")
    a("s_barrier")
    stamp(a)
    ACC = 64
    ABUF = [8, 216]

    def lda(ks):
        g = []
        for mt in range(8):
            off = (ks * 8 + mt) * 1024
            if off < 0x10000:
                g.append(["@lg:a%d_%d" % (ks, mt), "ds_read_b128 %s, v5 offset:%d" % (vr(ABUF[ks & 1] + mt * 4), off)])
            else:
                g.append(["@lg:a%d_%d" % (ks, mt), "ds_read_b128 %s, v7 offset:%d" % (vr(ABUF[ks & 1] + mt * 4), off - 0x10000)])
        return g
    for g in lda(0):
        for l in g:
            a(l)
    for ks in range(14):
        ab = ABUF[ks & 1]
        mf = []
        for mt in range(8):
            for f in range(4):
                acc = ACC + (mt * 4 + f) * 4
                pre = "@lgwait:a%d_%d\n" % (ks, mt) if f == 0 else ""
                mf.append(pre + "v_mfma_f32_16x16x32_bf16 %s, %s, %s, %s" % (vr(acc), ar((ks * 4 + f) * 4), vr(ab + mt * 4), "0" if ks == 0 else vr(acc)))
        side1 = (al(ks + PD) if ks + PD < 14 else []) + (wl(ks + PW) if ks + PW < 14 else [])
        interleave(a, mf[:16], side1)
        if ks + 1 < 14:
            a("@vmwait:k%d" % (ks + 1))
            a("s_barrier")
        side2 = lda(ks + 1) if ks + 1 < 14 else []
        interleave(a, mf[16:], side2)
    stamp(a)
    a("v_add_u32 v8, 114688, v6")
    for mt in range(8):
        a("ds_read_b64 %s, v8 offset:%d" % (vr(16 + mt * 2, 2), mt * 128))
    a("s_lshl_b32 s12, s36, 3")
    a("s_mul_i32 s12, s12, %d" % (56 * 1024))
    a("s_lshl_b32 s13, s17, 10")
    a("s_add_u32 s12, s12, s13")
    a("s_add_u32 s12, s12, 0x%x" % HF(L))
    a("s_waitcnt lgkmcnt(0)")
    for mt in range(8):
        nm = 16 + mt * 2
        rs = nm + 1
        a("v_mul_f32 v%d, v%d, v%d" % (rs, rs, rs))
        for p in range(2):
            g = ACC + (mt * 4 + p) * 4
            u = ACC + (mt * 4 + 2 + p) * 4
            for r in range(0, 4, 2):
                a("v_pk_fma_f32 %s, %s, %s, %s op_sel_hi:[0,1,1]" % (vr(g + r, 2), vr(nm, 2), vr(CSB + p * 4 + r, 2), vr(g + r, 2)))
                a("v_pk_fma_f32 %s, %s, %s, %s op_sel_hi:[0,1,1]" % (vr(u + r, 2), vr(nm, 2), vr(CSB + 8 + p * 4 + r, 2), vr(u + r, 2)))
        for p in range(2):
            g = ACC + (mt * 4 + p) * 4
            u = ACC + (mt * 4 + 2 + p) * 4
            for r in range(0, 4, 2):
                a("v_pk_mul_f32 %s, %s, %s" % (vr(g + r, 2), vr(g + r, 2), vr(u + r, 2)))
        for p in range(2):
            g = ACC + (mt * 4 + p) * 4
            for r in range(0, 4, 2):
                a("v_pk_mul_f32 %s, %s, %s op_sel:[0,1] op_sel_hi:[1,1]" % (vr(g + r, 2), vr(g + r, 2), vr(nm, 2)))
        d = 32 + (mt & 3) * 4
        for p in range(2):
            g = ACC + (mt * 4 + p) * 4
            a("v_cvt_pk_bf16_f32 v%d, v%d, v%d" % (d + 2 * p, g, g + 1))
            a("v_cvt_pk_bf16_f32 v%d, v%d, v%d" % (d + 2 * p + 1, g + 2, g + 3))
        a("buffer_store_dwordx4 %s, v5, s[4:7], s12 offen" % vr(d) + SC)
        a("s_add_u32 s12, s12, %d" % (56 * 1024))
    sync_signal(a, bar_off(L, 2))


def gen_mega(a):
    name = "mega_kernel"
    kernel_begin(a, name)
    a("s_cmp_ge_u32 s2, 256")
    a("s_cbranch_scc1 L_mega_end")
    ws_srd(a, 4)
    a("s_load_dwordx2 s[32:33], s[0:1], 56")
    a("s_mov_b32 s34, %d" % OUT_BYTES)
    a("s_mov_b32 s35, 0x20000")
    lane_setup(a)
    a("s_and_b32 s8, s2, 7")
    a("s_lshr_b32 s9, s2, 3")
    a("s_lshl_b32 s36, s8, 1")
    a("s_lshr_b32 s10, s9, 4")
    a("s_add_u32 s36, s36, s10")
    a("s_and_b32 s37, s9, 15")
    a("s_mov_b32 s38, %s" % INV448)
    a("s_mov_b32 s39, %s" % EPS)
    a("s_mov_b32 s40, %s" % ONES_BF)
    a("s_waitcnt lgkmcnt(0)")
    for L in range(2):
        phase_qkv(a, L)
        stamp_flush(a, 4)
        phase_attn(a, L)
        stamp_flush(a, 4)
        a("s_cmp_ge_u32 s37, 14")
        a("s_cbranch_scc1 L_mega_skip%d" % L)
        phase_gemm_res(a, L, 16, OF(L), WOF, XF(2 * L), XF(2 * L + 1), False, 0, 16, 1)
        stamp_flush(a, 4)
        phase_gateup(a, L)
        stamp_flush(a, 4)
        phase_gemm_res(a, L, 56, HF(L), WDF, XF(2 * L + 1), XF(2 * L + 2) if L == 0 else 0, L == 1, 2, 14, 3)
        stamp_flush(a, 4)
        a.label("L_mega_skip%d" % L)
    a.label("L_mega_end")
    a("s_endpgm")
    kernel_desc(name, 512, 60, 256)


def main():
    global STAMP
    if len(sys.argv) > 2 and sys.argv[2] == "stamp":
        STAMP = True
    a = Asm()
    gen_prep(a)
    gen_mega(a)
    hdr = open("cdna_kernels/%s.s.ref" % NAME).read().split("\n")
    head = [l for l in hdr if l.startswith(";") and "@launch" not in l and "Override launch" not in l and "grid=ceil" not in l]
    launches = [
        ("prep_kernel", 368, 256, PREP_LDS),
        ("mega_kernel", 256, 256, 114688 + 1024),
    ]
    out = "\n".join(head) + "\n"
    for (k, g, b, l) in launches:
        out += "; @launch kernel=%s grid=(%d,1,1) block=(%d,1,1) lds=%d\n" % (k, g, b, l)
    out += '.amdgcn_target "amdgcn-amd-amdhsa--gfx950"\n.text\n'
    out += a.text()
    out += '.section .rodata,"a"\n'
    for kd in KDS:
        out += ".p2align 6\n" + kd + "\n"
    path = sys.argv[1] if len(sys.argv) > 1 else "cdna_kernels/%s.s" % NAME
    open(path, "w").write(out)
    print("wrote", path, len(out))


if __name__ == "__main__":
    main()
```

```python
import sys, struct, math

NAME = "interleave_layers__sliding_block__glu_gated_bilinear__prompt"

def XF(n): return n * 0x200000
WQKVF = 0x800000
WOF = 0xA00000
WGUF = 0xB00000
WDF = 0xF00000
CS = 0x1100000
CS_G = CS + 8192
CS_U = CS + 16384
def STP(n): return 0x1140000 + n * 0x20000
SYNC = 0x1200000
def QF(L): return 0x1400000 + L * 0x1000000
def KF(L): return QF(L) + 0x200000
def VF(L): return QF(L) + 0x400000
def OF(L): return QF(L) + 0x600000
def HF(L): return QF(L) + 0x800000
WS_SIZE = 0x4000000
SC = " sc0 sc1"

OUT_BYTES = 2048 * 448 * 2
INV448 = "0x3b124925"
EPS = "0x3727c5ac"
ONES_BF = "0x3f803f80"


class Asm:
    def __init__(self):
        self.lines = []
        self.uid = 0
        self.vm = []
        self.lg = []

    def reset_counters(self):
        self.vm = []
        self.lg = []

    def __call__(self, s):
        for l in s.strip("\n").split("\n"):
            l = l.strip()
            if l.startswith("@vm:"):
                self.vm.append(l[4:])
            elif l.startswith("@lg:"):
                self.lg.append(l[4:])
            elif l.startswith("@vmwait:"):
                tag = l[8:]
                idx = max(i for i, t in enumerate(self.vm) if t == tag)
                n = len(self.vm) - 1 - idx
                self.lines.append("    s_waitcnt vmcnt(%d)" % min(n, 63))
            elif l.startswith("@lgwait:"):
                tag = l[8:]
                idx = max(i for i, t in enumerate(self.lg) if t == tag)
                n = len(self.lg) - 1 - idx
                self.lines.append("    s_waitcnt lgkmcnt(%d)" % min(n, 15))
            else:
                self.lines.append("    " + l)

    def label(self, l):
        self.lines.append(l + ":")

    def raw(self, s):
        self.lines.append(s)

    def newlabel(self, base):
        self.uid += 1
        return "L_%s_%d" % (base, self.uid)

    def text(self):
        return "\n".join(self.lines) + "\n"


def vr(b, n=4, k="v"):
    return "%s[%d:%d]" % (k, b, b + n - 1)


def ar(b, n=4):
    return vr(b, n, "a")


def kernel_begin(a, name):
    a.raw(".globl %s" % name)
    a.raw(".p2align 8")
    a.raw(".type %s,@function" % name)
    a.label(name)
    a.reset_counters()


KDS = []
STAMP = False
STAMP_BASE = 0x3800000
_stamp_n = [0]
_kern_idx = [0]


def kernel_desc(name, vgpr, sgpr, accum):
    if STAMP:
        sgpr = 96
    KDS.append(""".amdhsa_kernel %s
  .amdhsa_next_free_vgpr %d
  .amdhsa_next_free_sgpr %d
  .amdhsa_accum_offset %d
  .amdhsa_group_segment_fixed_size 0
  .amdhsa_kernarg_size 80
  .amdhsa_user_sgpr_count 2
  .amdhsa_user_sgpr_kernarg_segment_ptr 1
  .amdhsa_system_sgpr_workgroup_id_x 1
.end_amdhsa_kernel""" % (name, vgpr, sgpr, accum))


def stamp(a, clk=False):
    if not STAMP:
        return
    k = _stamp_n[0]
    _stamp_n[0] += 1
    a("%s s[%d:%d]" % ("s_memtime" if clk else "s_memrealtime", 60 + 2 * k, 61 + 2 * k))


def stamp_flush(a, srd, wpw=4):
    if not STAMP:
        return
    n = _stamp_n[0]
    a("s_memrealtime s[%d:%d]" % (60 + 2 * n, 61 + 2 * n))
    n += 1
    a("s_waitcnt lgkmcnt(0) vmcnt(0)")
    a("s_mul_i32 s58, s2, %d" % wpw)
    a("s_add_u32 s58, s58, s3")
    a("s_add_u32 s58, s58, %d" % (_kern_idx[0] * 4096))
    a("s_lshl_b32 s58, s58, 6")
    a("s_add_u32 s58, s58, 0x%x" % STAMP_BASE)
    a("v_mov_b32 v1, 0")
    for k in range(n):
        a("v_mov_b32 v2, s%d" % (60 + 2 * k))
        a("buffer_store_dword v2, v1, s[%d:%d], s58 offen offset:%d" % (srd, srd + 3, 4 * k))
    _stamp_n[0] = 0
    _kern_idx[0] += 1


def ws_srd(a, s):
    a("s_load_dwordx2 s[%d:%d], s[0:1], 72" % (s, s + 1))
    a("s_mov_b32 s%d, 0x%x" % (s + 2, WS_SIZE))
    a("s_mov_b32 s%d, 0x20000" % (s + 3))


def lane_setup(a):
    a("v_lshrrev_b32 v1, 6, v0")
    a("v_and_b32 v2, 63, v0")
    a("v_and_b32 v3, 15, v0")
    a("v_bfe_u32 v4, v0, 4, 2")
    a("v_readfirstlane_b32 s3, v1")
    a("v_lshlrev_b32 v5, 4, v2")


def reduce_g(a, x, t, op="v_add_f32"):
    a("v_mov_b32 v%d, v%d" % (t, x))
    a("s_nop 1")
    a("v_permlane16_swap_b32 v%d, v%d" % (x, t))
    a("%s v%d, v%d, v%d" % (op, x, x, t))
    a("v_mov_b32 v%d, v%d" % (t, x))
    a("s_nop 1")
    a("v_permlane32_swap_b32 v%d, v%d" % (x, t))
    a("%s v%d, v%d, v%d" % (op, x, x, t))


def reduce_g_multi(a, xs, ts, op="v_add_f32"):
    for perm in ("v_permlane16_swap_b32", "v_permlane32_swap_b32"):
        for x, t in zip(xs, ts):
            a("v_mov_b32 v%d, v%d" % (t, x))
        if len(xs) < 3:
            a("s_nop 1")
        for x, t in zip(xs, ts):
            a("%s v%d, v%d" % (perm, x, t))
        for x, t in zip(xs, ts):
            a("%s v%d, v%d, v%d" % (op, x, x, t))


def ln_stats(a, s1, s2, t, sinv, seps):
    a("v_mul_f32 v%d, s%d, v%d" % (s1, sinv, s1))
    a("v_mul_f32 v%d, s%d, v%d" % (s2, sinv, s2))
    a("v_fma_f32 v%d, -v%d, v%d, v%d" % (s2, s1, s1, s2))
    a("v_max_f32 v%d, 0, v%d" % (s2, s2))
    a("v_cvt_pk_bf16_f32 v%d, v%d, v%d" % (t, s1, s2))
    a("v_lshlrev_b32 v%d, 16, v%d" % (s1, t))
    a("v_xor_b32 v%d, 0x80000000, v%d" % (s1, s1))
    a("v_and_b32 v%d, 0xffff0000, v%d" % (s2, t))
    a("v_add_f32 v%d, s%d, v%d" % (s2, seps, s2))
    a("v_cvt_pk_bf16_f32 v%d, v%d, v%d" % (s2, s2, s2))
    a("v_and_b32 v%d, 0xffff0000, v%d" % (s2, s2))
    a("v_sqrt_f32 v%d, v%d" % (s2, s2))
    a("s_nop 0")
    a("v_cvt_pk_bf16_f32 v%d, v%d, v%d" % (s2, s2, s2))
    a("v_and_b32 v%d, 0xffff0000, v%d" % (s2, s2))
    a("v_rcp_f32 v%d, v%d" % (s2, s2))
    a("s_nop 0")


def interleave(a, main, side, start=0, end=None):
    n = len(main)
    if end is None:
        end = n
    span = max(end - start, 1)
    k = len(side)
    pos = [start + (i * span) // k for i in range(k)] if k else []
    j = 0
    for i, m in enumerate(main):
        while j < k and pos[j] <= i:
            for l in side[j]:
                a(l)
            j += 1
        a(m)
    while j < k:
        for l in side[j]:
            a(l)
        j += 1


def stats_load(a, smt, vdst, vtmp, tag, stp):
    a("v_lshlrev_b32 v%d, 14, v4" % vtmp)
    a("v_lshl_add_u32 v%d, v3, 3, v%d" % (vtmp, vtmp))
    a("v_add_u32 v%d, 0x10000, v%d" % (vtmp + 1, vtmp))
    a("v_cmp_gt_u32 vcc, 3, v4")
    a("v_mov_b32 v%d, 0x40000000" % (vdst))
    a("s_lshl_b32 s30, s%d, 7" % smt)
    a("s_add_u32 s30, s30, 0x%x" % stp)
    a("v_cndmask_b32 v%d, v%d, v%d, vcc" % (vtmp + 1, vdst, vtmp + 1))
    for m in range(2):
        a("@vm:" + tag)
        a("buffer_load_dwordx2 %s, v%d, s[4:7], s30 offen offset:%d" % (vr(vdst + m * 4, 2), vtmp, m * 128) + SC)
        a("@vm:" + tag)
        a("buffer_load_dwordx2 %s, v%d, s[4:7], s30 offen offset:%d" % (vr(vdst + m * 4 + 2, 2), vtmp + 1, m * 128) + SC)


def stats_finish(a, vsrc, ST, tmps, sinv, seps):
    for m in range(2):
        a("v_add_f32 v%d, v%d, v%d" % (ST + m, vsrc + m * 4, vsrc + m * 4 + 2))
        a("v_add_f32 v%d, v%d, v%d" % (ST + 2 + m, vsrc + m * 4 + 1, vsrc + m * 4 + 3))
    reduce_g_multi(a, [ST, ST + 1, ST + 2, ST + 3], tmps)
    for m in range(2):
        ln_stats(a, ST + m, ST + 2 + m, tmps[0], sinv, seps)


PREP_LDS = 4 * 9216 + 2048


def gen_prep(a):
    name = "prep_kernel"
    kernel_begin(a, name)
    a("s_cmp_ge_u32 s2, 368")
    a("s_cbranch_scc1 L_prep_end2")
    stamp(a)
    a("s_load_dwordx16 s[8:23], s[0:1], 0")
    a("s_load_dwordx2 s[28:29], s[0:1], 72")
    lane_setup(a)
    a("s_mov_b32 s30, 0x%x" % WS_SIZE)
    a("s_mov_b32 s31, 0x20000")
    a("s_mov_b32 s7, 0x20000")
    a("s_mov_b32 s39, %s" % ONES_BF)
    a("v_mov_b32 v15, 0x40000000")
    a("v_lshrrev_b32 v14, 2, v3")
    a("s_lshr_b32 s55, s2, 2")
    a("s_and_b32 s53, s2, 3")
    a("s_lshl_b32 s53, s53, 2")
    a("s_add_u32 s53, s53, s3")
    a("s_waitcnt lgkmcnt(0)")
    a("s_cmp_ge_u32 s2, 240")
    a("s_cbranch_scc1 L_prep_x")
    a("s_cmp_ge_u32 s55, 56")
    a("s_cbranch_scc1 L_prep_wo")
    a("s_cmp_ge_u32 s55, 40")
    a("s_cbranch_scc1 L_prep_wd")
    a("s_cmp_ge_u32 s55, 12")
    a("s_cbranch_scc1 L_prep_gu")
    a("s_lshr_b32 s40, s55, 2")
    a("s_and_b32 s41, s55, 3")
    a("s_mov_b32 s4, s10")
    a("s_mov_b32 s5, s11")
    a("s_mov_b32 s6, %d" % (448 * 1344 * 2))
    a("s_mov_b32 s32, 2688")
    a("s_mov_b32 s33, %d" % (32 * 2688))
    a("s_mov_b32 s38, 0")
    a("s_mov_b32 s35, 6144")
    a("s_mov_b32 s36, 14")
    a("s_mov_b32 s50, %d" % (84 * 1024))
    a("s_mov_b32 s51, 1024")
    a("s_mov_b32 s52, 8")
    a("s_lshl_b32 s42, s41, 2")
    a("v_add_u32 v6, s42, v14")
    a("v_mul_u32_u24 v7, 28, v6")
    a("v_and_b32 v8, 3, v3")
    a("v_lshl_add_u32 v7, v8, 3, v7")
    a("s_mul_i32 s42, s40, 448")
    a("v_add_u32 v7, s42, v7")
    a("v_lshlrev_b32 v7, 1, v7")
    a("v_mul_u32_u24 v8, %d, v4" % (4 * 2688))
    a("v_add_u32 v7, v7, v8")
    a("v_add_u32 v9, %d, v7" % (16 * 2688))
    a("s_mul_i32 s34, s41, %d" % (4 * 84 * 1024))
    a("s_lshl_b32 s42, s40, 11")
    a("s_add_u32 s34, s34, s42")
    a("s_add_u32 s34, s34, 0x%x" % WQKVF)
    a("s_lshl_b32 s42, s41, 2")
    a("v_add_u32 v11, s42, v4")
    a("v_mul_u32_u24 v11, 384, v11")
    a("v_lshl_add_u32 v11, v3, 3, v11")
    a("s_lshl_b32 s49, s40, 7")
    a("s_add_u32 s49, s49, 0x%x" % CS)
    a("s_mov_b32 s48, 1")
    a("s_mov_b32 s37, 0")
    a("s_branch L_prep_go")
    a.label("L_prep_gu")
    a("s_sub_u32 s40, s55, 12")
    a("s_cmp_ge_u32 s40, 14")
    a("s_cselect_b32 s41, 1, 0")
    a("s_cselect_b32 s4, s18, s16")
    a("s_cselect_b32 s5, s19, s17")
    a("s_mul_i32 s42, s41, 14")
    a("s_sub_u32 s40, s40, s42")
    a("s_mov_b32 s6, %d" % (448 * 1792 * 2))
    a("s_mov_b32 s32, 3584")
    a("s_mov_b32 s33, %d" % (32 * 3584))
    a("s_mov_b32 s38, 0")
    a("s_mov_b32 s35, 4096")
    a("s_mov_b32 s36, 14")
    a("s_mov_b32 s50, %d" % (56 * 1024))
    a("s_mov_b32 s51, 1024")
    a("s_mov_b32 s52, 8")
    a("s_lshl_b32 s42, s40, 8")
    a("v_lshl_add_u32 v7, v3, 4, s42")
    a("v_mul_u32_u24 v8, %d, v4" % (4 * 3584))
    a("v_add_u32 v7, v7, v8")
    a("v_add_u32 v9, %d, v7" % (16 * 3584))
    a("s_mul_i32 s34, s40, %d" % (4 * 56 * 1024))
    a("s_lshl_b32 s42, s41, 11")
    a("s_add_u32 s34, s34, s42")
    a("s_add_u32 s34, s34, 0x%x" % WGUF)
    a("v_lshlrev_b32 v11, 3, v2")
    a("s_lshl_b32 s49, s40, 9")
    a("s_lshl_b32 s42, s41, 13")
    a("s_add_u32 s49, s49, s42")
    a("s_add_u32 s49, s49, 0x%x" % CS_G)
    a("s_mov_b32 s48, 0")
    a("s_mov_b32 s37, 0")
    a("s_branch L_prep_go")
    a.label("L_prep_wd")
    a("s_sub_u32 s40, s55, 40")
    a("s_and_b32 s41, s40, 3")
    a("s_lshr_b32 s40, s40, 2")
    a("s_mov_b32 s4, s20")
    a("s_mov_b32 s5, s21")
    a("s_mov_b32 s6, %d" % (1792 * 448 * 2))
    a("s_mov_b32 s32, 896")
    a("s_mov_b32 s33, %d" % (32 * 896))
    a("s_mul_i32 s38, s41, %d" % (14 * 32 * 896))
    a("s_mov_b32 s35, 1024")
    a("s_mov_b32 s36, 14")
    a("s_mov_b32 s50, %d" % (112 * 1024))
    a("s_mov_b32 s51, %d" % (56 * 1024))
    a("s_cmp_eq_u32 s40, 3")
    a("s_cselect_b32 s52, 4, 8")
    a("s_lshl_b32 s42, s40, 8")
    a("v_lshl_add_u32 v7, v3, 4, s42")
    a("v_mul_u32_u24 v8, %d, v4" % (4 * 896))
    a("v_add_u32 v7, v7, v8")
    a("v_add_u32 v9, %d, v7" % (16 * 896))
    a("s_mul_i32 s34, s40, %d" % (8 * 56 * 1024))
    a("s_mul_i32 s42, s41, %d" % (14 * 1024))
    a("s_add_u32 s34, s34, s42")
    a("s_add_u32 s34, s34, 0x%x" % WDF)
    a("s_mov_b32 s48, 0")
    a("s_mov_b32 s49, 0")
    a("s_mov_b32 s37, -1")
    a("v_mov_b32 v11, 0")
    a("s_branch L_prep_go")
    a.label("L_prep_wo")
    a("s_sub_u32 s40, s55, 56")
    a("s_mov_b32 s4, s12")
    a("s_mov_b32 s5, s13")
    a("s_mov_b32 s6, %d" % (448 * 448 * 2))
    a("s_mov_b32 s32, 896")
    a("s_mov_b32 s33, %d" % (28 * 896))
    a("s_mov_b32 s38, 0")
    a("s_mov_b32 s35, 1024")
    a("s_mov_b32 s36, 16")
    a("s_mov_b32 s50, %d" % (32 * 1024))
    a("s_mov_b32 s51, %d" % (16 * 1024))
    a("s_cmp_eq_u32 s40, 3")
    a("s_cselect_b32 s52, 4, 8")
    a("s_lshl_b32 s42, s40, 8")
    a("v_lshl_add_u32 v7, v3, 4, s42")
    a("v_mul_u32_u24 v8, %d, v4" % (4 * 896))
    a("v_add_u32 v7, v7, v8")
    a("v_add_u32 v9, %d, v7" % (16 * 896))
    a("v_cmp_gt_u32 vcc, 3, v4")
    a("s_lshl_b32 s34, s40, 17")
    a("s_add_u32 s34, s34, 0x%x" % WOF)
    a("s_mov_b32 s48, 0")
    a("s_mov_b32 s49, 0")
    a("s_mov_b32 s37, -1")
    a("v_mov_b32 v11, 0")
    a("v_cndmask_b32 v9, v15, v9, vcc")
    a.label("L_prep_go")
    a("v_and_b32 v8, 3, v3")
    a("v_cmp_ne_u32 s[56:57], 3, v8")
    CA = 16
    for e in range(8):
        a("v_mov_b32 v%d, 0" % (CA + e))
    a("s_cmp_ge_u32 s53, s36")
    a("s_cbranch_scc1 L_prep_cs")
    RB = 32
    a("s_mul_i32 s45, s53, s33")
    a("s_add_u32 s45, s45, s38")
    a("s_add_u32 s46, s45, s32")
    a("s_add_u32 s47, s46, s32")
    a("s_add_u32 s54, s47, s32")
    for j, sg in enumerate((45, 46, 47, 54)):
        a("buffer_load_dwordx4 %s, v7, s[4:7], s%d offen" % (vr(RB + j * 4), sg))
    for j, sg in enumerate((45, 46, 47, 54)):
        a("buffer_load_dwordx4 %s, v9, s[4:7], s%d offen" % (vr(RB + 16 + j * 4), sg))
    a("s_mul_i32 s44, s3, 9216")
    a("v_mul_u32_u24 v12, %d, v4" % (4 * 288))
    a("v_lshl_add_u32 v12, v3, 4, v12")
    a("v_add_u32 v12, s44, v12")
    a("v_lshl_add_u32 v13, v4, 2, v14")
    a("v_mul_u32_u24 v13, 288, v13")
    a("v_lshl_add_u32 v13, v8, 3, v13")
    a("v_add_u32 v13, s44, v13")
    a("s_waitcnt vmcnt(0)")
    a("s_cmp_eq_u32 s48, 0")
    a("s_cbranch_scc1 L_prep_nopad")
    for row in range(8):
        for d in (2, 3):
            r = RB + row * 4 + d
            a("v_cndmask_b32 v%d, 0, v%d, s[56:57]" % (r, r))
    a.label("L_prep_nopad")
    for j in range(4):
        a("ds_write_b128 v12, %s offset:%d" % (vr(RB + j * 4), j * 288))
        a("ds_write_b128 v12, %s offset:%d" % (vr(RB + 16 + j * 4), (16 + j) * 288))
    a("s_waitcnt lgkmcnt(0)")
    OB = 64
    for b in range(8):
        a("ds_read_b64_tr_b16 %s, v13 offset:%d" % (vr(OB + b * 4, 2), b * 32))
        a("ds_read_b64_tr_b16 %s, v13 offset:%d" % (vr(OB + b * 4 + 2, 2), b * 32 + 16 * 288))
    a("s_mul_i32 s45, s53, s35")
    a("s_add_u32 s45, s45, s34")
    a("s_waitcnt lgkmcnt(0)")
    for b in range(8):
        if b == 4:
            a("s_cmp_le_u32 s52, 4")
            a("s_cbranch_scc1 L_prep_end")
        if b & 1:
            a("s_add_u32 s46, s45, s51")
            a("buffer_store_dwordx4 %s, v5, s[28:31], s46 offen" % vr(OB + b * 4))
            a("s_add_u32 s45, s45, s50")
        else:
            a("buffer_store_dwordx4 %s, v5, s[28:31], s45 offen" % vr(OB + b * 4))
        for qq in range(4):
            a("v_dot2c_f32_bf16 v%d, s39, v%d" % (CA + b, OB + b * 4 + qq))
    a.label("L_prep_cs")
    a("s_cmp_eq_u32 s37, -1")
    a("s_cbranch_scc1 L_prep_end")
    a("s_nop 3")
    reduce_g_multi(a, [CA + e for e in range(8)], [24 + e for e in range(8)])
    a("s_lshl_b32 s44, s3, 9")
    a("s_add_u32 s44, s44, %d" % (4 * 9216))
    a("v_lshl_add_u32 v24, v3, 2, s44")
    for b in range(8):
        a("ds_write_b32 v24, v%d offset:%d" % (CA + b, b * 64))
    a("s_waitcnt lgkmcnt(0)")
    a("s_barrier")
    a("s_cmp_lg_u32 s3, 0")
    a("s_cbranch_scc1 L_prep_end")
    a("v_lshlrev_b32 v24, 3, v2")
    a("v_add_u32 v24, %d, v24" % (4 * 9216))
    for w in range(4):
        a("ds_read_b64 %s, v24 offset:%d" % (vr(32 + 2 * w, 2), w * 512))
    a("s_and_b32 s44, s2, 3")
    a("s_lshl_b32 s44, s44, 15")
    a("s_add_u32 s49, s49, s44")
    a("s_waitcnt lgkmcnt(0)")
    a("v_pk_add_f32 v[32:33], v[32:33], v[34:35]")
    a("v_pk_add_f32 v[36:37], v[36:37], v[38:39]")
    a("v_pk_add_f32 v[32:33], v[32:33], v[36:37]")
    a("buffer_store_dwordx2 v[32:33], v11, s[28:31], s49 offen")
    a("s_branch L_prep_end")
    a.label("L_prep_x")
    a("s_sub_u32 s40, s2, 240")
    a("s_cmp_ge_u32 s40, 96")
    a("s_cbranch_scc1 L_prep_x2")
    a("v_mov_b32 v16, 0")
    a("v_mov_b32 v17, 0")
    a("v_mov_b32 v18, 0")
    a("v_mov_b32 v19, 0")
    a("s_lshl_b32 s41, s40, 10")
    a("s_add_u32 s41, s41, 0x%x" % SYNC)
    a("buffer_store_dwordx4 v[16:19], v5, s[28:31], s41 offen")
    a.label("L_prep_x2")
    a("s_mov_b32 s4, s8")
    a("s_mov_b32 s5, s9")
    a("s_mov_b32 s6, %d" % OUT_BYTES)
    a("s_lshl_b32 s42, s40, 4")
    a("v_add_u32 v7, s42, v3")
    a("v_lshlrev_b32 v11, 3, v7")
    a("v_mul_u32_u24 v7, 896, v7")
    a("v_lshlrev_b32 v8, 3, v4")
    a("v_add_u32 v7, v7, v8")
    a("s_mul_i32 s34, s40, %d" % (14 * 1024))
    a("s_add_u32 s34, s34, 0x%x" % XF(0))
    a("v_mov_b32 v60, 0")
    a("v_mov_b32 v61, 0")
    for q in range(4):
        lskip = a.newlabel("prep_xld")
        a("s_add_u32 s44, s3, %d" % (4 * q))
        a("s_cmp_ge_u32 s44, 14")
        a("s_cbranch_scc1 %s" % lskip)
        a("s_lshl_b32 s45, s44, 6")
        b = 32 + q * 4
        a("buffer_load_dwordx2 %s, v7, s[4:7], s45 offen" % vr(b, 2))
        a("buffer_load_dwordx2 %s, v7, s[4:7], s45 offen offset:32" % vr(b + 2, 2))
        a.label(lskip)
    a("s_waitcnt vmcnt(0)")
    for q in range(4):
        lskip = a.newlabel("prep_xst")
        a("s_add_u32 s44, s3, %d" % (4 * q))
        a("s_cmp_ge_u32 s44, 14")
        a("s_cbranch_scc1 %s" % lskip)
        a("s_lshl_b32 s45, s44, 10")
        a("s_add_u32 s45, s45, s34")
        b = 32 + q * 4
        a("buffer_store_dwordx4 %s, v5, s[28:31], s45 offen" % vr(b))
        for k in range(4):
            a("v_dot2c_f32_bf16 v60, s39, v%d" % (b + k))
            a("v_dot2c_f32_bf16 v61, v%d, v%d" % (b + k, b + k))
        a.label(lskip)
    a("s_nop 3")
    reduce_g_multi(a, [60, 61], [62, 63])
    a("s_lshl_b32 s45, s3, 14")
    a("s_add_u32 s45, s45, 0x%x" % STP(0))
    a("buffer_store_dwordx2 v[60:61], v11, s[28:31], s45 offen")
    a("s_cmp_ge_u32 s3, 3")
    a("s_cbranch_scc1 L_prep_end")
    a("v_mov_b32 v62, 0")
    a("v_mov_b32 v63, 0")
    a("s_add_u32 s45, s45, 0x10000")
    a("buffer_store_dwordx2 v[62:63], v11, s[28:31], s45 offen")
    a.label("L_prep_end")
    stamp_flush(a, 28)
    a.label("L_prep_end2")
    a("s_endpgm")
    kernel_desc(name, 96, 60, 96)


def sync_signal(a, off_lines):
    for l in off_lines:
        a(l)
    a("s_waitcnt vmcnt(0)")
    a("s_barrier")
    l = a.newlabel("sig")
    a("s_cmp_lg_u32 s3, 0")
    a("s_cbranch_scc1 %s" % l)
    a("s_mov_b64 exec, 1")
    a("v_mov_b32 v254, 1")
    a("v_mov_b32 v255, 0")
    a("buffer_atomic_add v254, v255, s[4:7], s41 offen sc1")
    a("s_mov_b64 exec, -1")
    a.label(l)


def sync_wait(a, off_lines, n, barrier=True):
    for l in off_lines:
        a(l)
    ld = a.newlabel("wdone")
    ll = a.newlabel("wloop")
    a("s_cmp_lg_u32 s3, 0")
    a("s_cbranch_scc1 %s" % ld)
    a("s_mov_b32 s42, 0x40000")
    a("v_mov_b32 v255, 0")
    a.label(ll)
    a("buffer_load_dword v254, v255, s[4:7], s41 offen sc0 sc1")
    a("s_waitcnt vmcnt(0)")
    a("v_readfirstlane_b32 s43, v254")
    a("s_cmp_ge_u32 s43, %d" % n)
    a("s_cbranch_scc1 %s" % ld)
    a("s_sub_u32 s42, s42, 1")
    a("s_cmp_eq_u32 s42, 0")
    a("s_cbranch_scc1 %s" % ld)
    a("s_sleep 1")
    a("s_branch %s" % ll)
    a.label(ld)
    if barrier:
        a("s_barrier")


def pre_block(a, groups, which):
    l = a.newlabel("pre")
    a("s_cmp_eq_u32 s3, 0" if which == 0 else "s_cmp_lg_u32 s3, 0")
    a("s_cbranch_scc1 %s" % l)
    for g in groups:
        for x in g:
            if which == 1 and x.startswith("@vm:"):
                continue
            a(x)
    a.label(l)


def bar_off(L, k):
    return ["s_lshl_b32 s41, s36, 9", "s_add_u32 s41, s41, 0x%x" % (SYNC + (L * 16 * 4 + k) * 128)]


def kv_off(L, drb):
    return ["s_sub_u32 s41, s36, %d" % drb, "s_lshl_b32 s41, s41, 4", "s_add_u32 s41, s41, s37", "s_lshl_b32 s41, s41, 7",
            "s_add_u32 s41, s41, 0x%x" % (SYNC + 0x8000 + L * 16 * 16 * 128)]


def phase_qkv(a, L):
    a.reset_counters()
    stamp(a)
    xin = XF(2 * L)
    a("s_lshl_b32 s12, s36, 3")
    a("s_lshl_b32 s13, s3, 1")
    a("s_add_u32 s12, s12, s13")
    a("s_mul_i32 s14, s12, %d" % (14 * 1024))
    a("s_add_u32 s14, s14, 0x%x" % xin)
    a("s_add_u32 s15, s14, %d" % (14 * 1024))
    a("s_mul_i32 s16, s37, %d" % (84 * 1024))
    a("s_add_u32 s16, s16, 0x%x" % WQKVF)
    a("s_mul_i32 s17, s3, %d" % (3 * 1024))
    a("s_add_u32 s16, s16, s17")
    a("v_add_u32 v8, 61440, v5")
    AB = 16
    CSB = 228
    ST = 224
    SL = 244
    a("s_mul_i32 s25, s37, 384")
    a("s_add_u32 s25, s25, 0x%x" % CS)
    a("v_lshlrev_b32 v10, 4, v4")
    a("v_lshlrev_b32 v11, 2, v3")
    CSV = 252
    for q in range(4):
        cb_ = CSB if q == 0 else 128 + (q - 1) * 20
        cv_ = CSV if q == 0 else 128 + (q - 1) * 20 + 16
        for nt in range(4):
            a("@vm:cs")
            a("buffer_load_dwordx4 %s, v10, s[4:7], s25 offen offset:%d" % (vr(cb_ + nt * 4), nt * 64))
        for nt in range(4, 6):
            a("@vm:cs")
            a("buffer_load_dword v%d, v11, s[4:7], s25 offen offset:%d" % (cv_ + nt - 4, nt * 64))
        a("s_add_u32 s25, s25, 0x8000")

    def w_loads(c):
        g = []
        first = ["s_add_u32 s18, s17, %d" % (c * 12 * 1024), "s_mov_b32 m0, s18", "s_add_u32 s19, s16, %d" % (c * 12 * 1024)]
        for j in range(3):
            g.append((first if j == 0 else []) + ["@vm:c%d" % c, "buffer_load_dwordx4 v5, s[4:7], s19 offen offset:%d lds" % (j * 1024)])
        return g

    def a_loads(c):
        g = []
        pre = ["s_add_u32 s23, s14, %d" % (c * 2048), "s_add_u32 s24, s15, %d" % (c * 2048)]
        for k2 in range(2):
            ks = 2 * c + k2
            for m in range(2):
                g.append((pre if (k2 == 0 and m == 0) else []) + ["@vm:c%d" % c,
                         "buffer_load_dwordx4 %s, v5, s[4:7], s%d offen offset:%d" % (vr(AB + (m * 14 + ks) * 4), 23 + m, k2 * 1024) + SC])
        return g
    wg_all = [g for c in range(7) for g in w_loads(c)]
    if L > 0:
        a("s_barrier")
        pre_block(a, wg_all, 0)
        sync_wait(a, bar_off(L - 1, 3), 14)
        pre_block(a, wg_all, 1)
    else:
        for g in wg_all:
            for l in g:
                a(l)
    stamp(a)
    stats_load(a, 12, SL, 6, "st", STP(2 * L))
    PD = 4
    for c in range(PD):
        for g in a_loads(c):
            for l in g:
                a(l)
    a("@vmwait:st")
    stats_finish(a, SL, ST, [12, 13, 14, 15], 38, 39)
    for q in range(3):
        for k in range(0, 16, 2):
            a("v_pk_add_f32 %s, %s, %s" % (vr(CSB + k, 2), vr(CSB + k, 2), vr(128 + q * 20 + k, 2)))
        a("v_pk_add_f32 %s, %s, %s" % (vr(CSV, 2), vr(CSV, 2), vr(128 + q * 20 + 16, 2)))
    a("@vmwait:c0")
    a("s_barrier")
    stamp(a)
    ACC = 128
    BB = 176

    def ldb(ks):
        return [["@lg:b%d_%d" % (ks, nt), "ds_read_b128 %s, v%d offset:%d" % (vr(BB + (ks & 1) * 24 + nt * 4), 5 if ks < 10 else 8,
                 ((ks * 6 + nt) * 1024) - (0 if ks < 10 else 61440))] for nt in range(6)]
    for g in ldb(0):
        for l in g:
            a(l)
    for ks in range(14):
        mf = []
        for m in range(2):
            af = AB + (m * 14 + ks) * 4
            for nt in range(6):
                bf = BB + (ks & 1) * 24 + nt * 4
                acc = ACC + (m * 6 + nt) * 4
                c = "0" if ks == 0 else vr(acc)
                pre = "@lgwait:b%d_%d\n" % (ks, nt) if m == 0 else ""
                if nt < 4:
                    mf.append(pre + "v_mfma_f32_16x16x32_bf16 %s, %s, %s, %s" % (vr(acc), vr(bf), vr(af), c))
                else:
                    mf.append(pre + "v_mfma_f32_16x16x32_bf16 %s, %s, %s, %s" % (vr(acc), vr(af), vr(bf), c))
        c = ks // 2
        if ks % 2 == 0 and ks > 0:
            a("@vmwait:c%d" % c)
        side1 = a_loads(c + PD) if (ks % 2 == 0 and c + PD < 7) else []
        interleave(a, mf[:6], side1)
        side2 = ldb(ks + 1) if ks + 1 < 14 else []
        interleave(a, mf[6:], side2)
    stamp(a)
    a("v_lshlrev_b32 v10, 4, v4")
    for r in range(4):
        a("v_add_u32 v%d, %d, v10" % (11 + r, 4 * r))
    for m in range(2):
        for r in range(4):
            a("ds_bpermute_b32 v%d, v%d, v%d" % (16 + m * 4 + r, 11 + r, ST + m))
            a("ds_bpermute_b32 v%d, v%d, v%d" % (24 + m * 4 + r, 11 + r, ST + 2 + m))
    a("s_lshl_b32 s26, s37, 17")
    a("s_lshl_b32 s27, s12, 10")
    a("s_add_u32 s26, s26, s27")
    a("s_add_u32 s28, s26, 0x%x" % VF(L))
    a("s_add_u32 s27, s26, 0x%x" % KF(L))
    a("s_add_u32 s26, s26, 0x%x" % QF(L))
    for m in range(2):
        for qk in (1, 0):
            for p in range(2):
                nt = qk * 2 + p
                acc = ACC + (m * 6 + nt) * 4
                for r in range(0, 4, 2):
                    a("v_pk_fma_f32 %s, %s, %s, %s op_sel:[%d,0,0] op_sel_hi:[%d,1,1]" % (vr(acc + r, 2), vr(ST, 2), vr(CSB + nt * 4 + r, 2), vr(acc + r, 2), m, m))
                for r in range(0, 4, 2):
                    a("v_pk_mul_f32 %s, %s, %s op_sel:[%d,0] op_sel_hi:[%d,1]" % (vr(acc + r, 2), vr(ST + 2, 2), vr(acc + r, 2), m, m))
            d = 32 + (m * 2 + qk) * 4
            for p in range(2):
                acc = ACC + (m * 6 + qk * 2 + p) * 4
                a("v_cvt_pk_bf16_f32 v%d, v%d, v%d" % (d + 2 * p, acc, acc + 1))
                a("v_cvt_pk_bf16_f32 v%d, v%d, v%d" % (d + 2 * p + 1, acc + 2, acc + 3))
            a("buffer_store_dwordx4 %s, v5, s[4:7], s%d offen offset:%d" % (vr(d), 26 + qk, m * 1024) + SC)
    a("s_waitcnt lgkmcnt(0)")
    a("v_cmp_eq_u32 vcc, 12, v3")
    for dt in range(2):
        nt = 4 + dt
        for m in range(2):
            acc = ACC + (m * 6 + nt) * 4
            for r in range(4):
                a("v_fma_f32 v%d, v%d, v%d, v%d" % (acc + r, 16 + m * 4 + r, CSV + dt, acc + r))
            for r in range(0, 4, 2):
                a("v_pk_mul_f32 %s, %s, %s" % (vr(acc + r, 2), vr(24 + m * 4 + r, 2), vr(acc + r, 2)))
            if dt == 1:
                for r in range(4):
                    a("v_cndmask_b32 v%d, v%d, 1.0, vcc" % (acc + r, acc + r))
        d = 48 + dt * 4
        for m in range(2):
            acc = ACC + (m * 6 + nt) * 4
            a("v_cvt_pk_bf16_f32 v%d, v%d, v%d" % (d + 2 * m, acc, acc + 1))
            a("v_cvt_pk_bf16_f32 v%d, v%d, v%d" % (d + 2 * m + 1, acc + 2, acc + 3))
        a("buffer_store_dwordx4 %s, v5, s[4:7], s28 offen offset:%d" % (vr(d), dt * 1024) + SC)
    sync_signal(a, kv_off(L, 0))


def phase_attn(a, L):
    a.reset_counters()
    stamp(a)
    sfx = "_%d" % L
    for d in (1, 2):
        l = a.newlabel("kvskip")
        a("s_cmp_lt_u32 s36, %d" % d)
        a("s_cbranch_scc1 %s" % l)
        sync_wait(a, kv_off(L, d), 1, barrier=False)
        a.label(l)
    a("s_barrier")
    stamp(a)
    a("s_lshl_b32 s11, s36, 2")
    a("s_add_u32 s11, s11, s3")
    a("s_lshl_b32 s12, s37, 17")
    a("s_lshl_b32 s13, s11, 11")
    a("s_add_u32 s13, s12, s13")
    a("s_add_u32 s14, s13, 0x%x" % QF(L))
    a("s_add_u32 s15, s13, 0x%x" % (KF(L) - 16 * 1024))
    a("s_add_u32 s16, s12, 0x%x" % VF(L))
    a("s_sub_i32 s18, s11, 8")
    QB = 8
    for t in range(2):
        a("@vm:q")
        a("buffer_load_dwordx4 %s, v5, s[4:7], s14 offen offset:%d" % (vr(QB + 4 * t), t * 1024) + SC)
    for kt in range(18):
        a("@vm:k%d" % kt)
        a("buffer_load_dwordx4 %s, v5, s[4:7], s15 offen offset:%d" % (ar(kt * 4), (kt % 4) * 1024) + SC)
        if kt % 4 == 3:
            a("s_add_u32 s15, s15, 4096")
    a("v_lshlrev_b32 v6, 2, v4")
    for r in range(4):
        a("v_add_u32 v7, %d, v6" % r)
        a("v_cmp_ge_u32 s[%d:%d], v3, v7" % (20 + 2 * r, 21 + 2 * r))
    a("v_mov_b32 v6, 0xff800000")
    SB = 16

    def S(t, kt):
        return SB + (t * 18 + kt) * 4
    vloads = []
    for s in range(9):
        pre = ["s_add_i32 s19, s18, %d" % s, "s_max_i32 s19, s19, 0", "s_lshl_b32 s19, s19, 11", "s_add_u32 s19, s19, s16"]
        for dt in range(2):
            vloads.append((pre if dt == 0 else []) + ["@vm:v", "buffer_load_dwordx4 %s, v5, s[4:7], s19 offen offset:%d" % (ar(72 + (s * 2 + dt) * 4), dt * 1024) + SC])
    mf = []
    for kt in range(18):
        first = True
        for t in range(2):
            if (t == 0 and kt == 17) or (t == 1 and kt == 0):
                continue
            pre = "@vmwait:k%d\n" % kt if first else ""
            first = False
            mf.append(pre + "v_mfma_f32_16x16x32_bf16 %s, %s, %s, 0" % (vr(S(t, kt)), ar(kt * 4), vr(QB + 4 * t)))
    interleave(a, mf, vloads)
    stamp(a)
    a("s_nop 7")
    a("s_lshl_b32 s17, s11, 1")
    a("s_sub_i32 s17, 16, s17")
    a("s_cmp_le_i32 s17, 0")
    a("s_cbranch_scc1 L_attn_noneg" + sfx)
    for kt in range(16):
        l = a.newlabel("attn_neg")
        a("s_cmp_le_i32 s17, %d" % kt)
        a("s_cbranch_scc1 %s" % l)
        for t in range(2):
            if (t == 1 and kt == 0):
                continue
            for r in range(4):
                a("v_mov_b32 v%d, v6" % (S(t, kt) + r))
        a.label(l)
    a.label("L_attn_noneg" + sfx)
    for t in range(2):
        for r in range(4):
            a("v_cndmask_b32 v%d, v%d, v6, s[%d:%d]" % (S(t, t) + r, S(t, t) + r, 20 + 2 * r, 21 + 2 * r))
            a("v_cndmask_b32 v%d, v6, v%d, s[%d:%d]" % (S(t, t + 16) + r, S(t, t + 16) + r, 20 + 2 * r, 21 + 2 * r))
    MX = 176
    regs = [[S(t, kt) + r for kt in range(t, t + 17) for r in range(4)] for t in range(2)]
    for t in range(2):
        a("v_max_f32 v%d, v%d, v%d" % (MX + t, regs[t][0], regs[t][1]))
    for k in range(2, 68, 2):
        for t in range(2):
            a("v_max3_f32 v%d, v%d, v%d, v%d" % (MX + t, MX + t, regs[t][k], regs[t][k + 1]))
    reduce_g_multi(a, [MX, MX + 1], [178, 179], "v_max_f32")
    c = (28 ** -0.5) * math.log2(math.e)
    chex = struct.unpack("<I", struct.pack("<f", c))[0]
    a("s_mov_b32 s28, 0x%08x" % chex)
    a("v_mov_b32 v188, s28")
    a("v_mov_b32 v189, s28")
    for t in range(2):
        a("v_mul_f32 v%d, -v188, v%d" % (180 + 2 * t, MX + t))
        a("v_mul_f32 v%d, -v188, v%d" % (181 + 2 * t, MX + t))
    for t in range(2):
        for kt in range(t, t + 17):
            for r in range(0, 4, 2):
                a("v_pk_fma_f32 %s, %s, v[188:189], %s" % (vr(S(t, kt) + r, 2), vr(S(t, kt) + r, 2), vr(180 + 2 * t, 2)))
            for r in range(4):
                a("v_exp_f32 v%d, v%d" % (S(t, kt) + r, S(t, kt) + r))
    a("s_nop 0")
    for t in range(2):
        for s in range(9):
            d = S(t, 2 * s)
            s0 = S(t, 2 * s)
            s1 = S(t, 2 * s + 1)
            if t == 1 and s == 0:
                a("v_cvt_pk_bf16_f32 v%d, v%d, v%d" % (d + 2, s1, s1 + 1))
                a("v_cvt_pk_bf16_f32 v%d, v%d, v%d" % (d + 3, s1 + 2, s1 + 3))
                a("v_mov_b32 v%d, 0" % d)
                a("v_mov_b32 v%d, 0" % (d + 1))
            elif t == 0 and s == 8:
                a("v_cvt_pk_bf16_f32 v%d, v%d, v%d" % (d, s0, s0 + 1))
                a("v_cvt_pk_bf16_f32 v%d, v%d, v%d" % (d + 1, s0 + 2, s0 + 3))
                a("v_mov_b32 v%d, 0" % (d + 2))
                a("v_mov_b32 v%d, 0" % (d + 3))
            else:
                a("v_cvt_pk_bf16_f32 v%d, v%d, v%d" % (d, s0, s0 + 1))
                a("v_cvt_pk_bf16_f32 v%d, v%d, v%d" % (d + 1, s0 + 2, s0 + 3))
                a("v_cvt_pk_bf16_f32 v%d, v%d, v%d" % (d + 2, s1, s1 + 1))
                a("v_cvt_pk_bf16_f32 v%d, v%d, v%d" % (d + 3, s1 + 2, s1 + 3))
    stamp(a)
    a("s_waitcnt vmcnt(0)")
    a("s_nop 1")
    OB = 160
    for s in range(9):
        for t in range(2):
            for dt in range(2):
                o = OB + (t * 2 + dt) * 4
                a("v_mfma_f32_16x16x32_bf16 %s, %s, %s, %s" % (vr(o), ar(72 + (s * 2 + dt) * 4), vr(S(t, 2 * s)), "0" if s == 0 else vr(o)))
    a("v_add_u32 v7, 48, v3")
    a("v_lshlrev_b32 v7, 2, v7")
    a("s_nop 7")
    for t in range(2):
        a("ds_bpermute_b32 v%d, v7, v%d" % (MX + t, OB + (t * 2 + 1) * 4))
    a("s_waitcnt lgkmcnt(0)")
    for t in range(2):
        a("v_rcp_f32 v%d, v%d" % (MX + t, MX + t))
    a("s_nop 0")
    a("s_lshl_b32 s12, s11, 15")
    a("s_lshl_b32 s13, s37, 10")
    a("s_add_u32 s12, s12, s13")
    a("s_add_u32 s12, s12, 0x%x" % OF(L))
    a("s_add_u32 s13, s12, 16384")
    for t in range(2):
        for dt in range(2):
            o = OB + (t * 2 + dt) * 4
            for r in range(4):
                a("v_mul_f32 v%d, v%d, v%d" % (o + r, MX + t, o + r))
        d = 180 + t * 4
        for dt in range(2):
            o = OB + (t * 2 + dt) * 4
            a("v_cvt_pk_bf16_f32 v%d, v%d, v%d" % (d + 2 * dt, o, o + 1))
            a("v_cvt_pk_bf16_f32 v%d, v%d, v%d" % (d + 2 * dt + 1, o + 2, o + 3))
        a("buffer_store_dwordx4 %s, v5, s[4:7], s%d offen" % (vr(d), 12 + t) + SC)
    sync_signal(a, bar_off(L, 0))


def phase_gemm_res(a, L, KS, AOFF, WOFF, xin, xout, final, wait_k, wait_n, sig_k):
    a.reset_counters()
    stamp(a)
    a("s_cmp_ge_u32 s37, 7")
    a("s_cselect_b32 s10, 1, 0")
    a("s_mul_i32 s11, s10, 7")
    a("s_sub_u32 s11, s37, s11")
    a("s_lshl_b32 s8, s36, 1")
    a("s_add_u32 s10, s10, s8")
    KW = KS // 4
    a("s_mul_i32 s12, s10, %d" % (4 * KS * 1024))
    a("s_mul_i32 s13, s3, %d" % (KW * 1024))
    a("s_add_u32 s12, s12, s13")
    a("s_add_u32 s12, s12, 0x%x" % AOFF)
    for m in range(1, 4):
        a("s_add_u32 s%d, s12, %d" % (12 + m, m * KS * 1024))
    a("s_mul_i32 s16, s11, %d" % (4 * KS * 1024))
    a("s_mul_i32 s20, s3, %d" % (KW * 1024))
    a("s_add_u32 s16, s16, s20")
    a("s_add_u32 s16, s16, 0x%x" % WOFF)
    for n in range(1, 4):
        a("s_add_u32 s%d, s16, %d" % (16 + n, n * KS * 1024))
    a("s_lshl_b32 s20, s10, 2")
    a("s_add_u32 s20, s20, s3")
    a("s_mul_i32 s21, s20, %d" % (14 * 1024))
    a("s_lshl_b32 s22, s11, 11")
    a("s_add_u32 s21, s21, s22")
    a("s_add_u32 s24, s21, 0x%x" % xout)
    a("s_add_u32 s21, s21, 0x%x" % xin)
    RX = 8
    DEPTH = min(KW, 7)
    ACC = 16

    def slot(ks):
        return (ks % DEPTH) * 32

    def wl(ks):
        g = []
        for m in range(4):
            g.append(["@vm:k%d" % ks, "buffer_load_dwordx4 %s, v5, s[4:7], s%d offen offset:%d" % (ar(slot(ks) + 16 + m * 4), 16 + m, (ks % 4) * 1024)])
        if ks % 4 == 3:
            g[-1] = g[-1] + ["s_add_u32 s%d, s%d, 4096" % (16 + k, 16 + k) for k in range(4)]
        return g

    def al(ks):
        g = []
        for m in range(4):
            g.append(["@vm:k%d" % ks, "buffer_load_dwordx4 %s, v5, s[4:7], s%d offen offset:%d" % (ar(slot(ks) + m * 4), 12 + m, (ks % 4) * 1024) + SC])
        if ks % 4 == 3:
            g[-1] = g[-1] + ["s_add_u32 s%d, s%d, 4096" % (12 + k, 12 + k) for k in range(4)]
        return g
    pre = [g for ks in range(DEPTH) for g in wl(ks)]
    pre.append(["@vm:rx", "buffer_load_dwordx4 %s, v5, s[4:7], s21 offen" % vr(RX) + SC])
    pre.append(["@vm:rx", "buffer_load_dwordx4 %s, v5, s[4:7], s21 offen offset:1024" % vr(RX + 4) + SC])
    pre_block(a, pre, 0)
    sync_wait(a, bar_off(L, wait_k), wait_n)
    pre_block(a, pre, 1)
    stamp(a)
    PD = min(KW, 4)
    for ks in range(PD):
        for g in al(ks):
            for l in g:
                a(l)
    na = PD
    nw = DEPTH
    for ks in range(KW):
        if ks == 1:
            stamp(a)
        mf = []
        for m in range(4):
            for n in range(4):
                acc = ACC + (m * 4 + n) * 4
                mf.append("v_mfma_f32_16x16x32_bf16 %s, %s, %s, %s" % (vr(acc), ar(slot(ks) + 16 + n * 4), ar(slot(ks) + m * 4), "0" if ks == 0 else vr(acc)))
        a("@vmwait:k%d" % ks)
        side = []
        while na < KW and na <= ks + DEPTH - 1 and len(side) < 8:
            side += al(na)
            na += 1
        while nw < KW and nw <= ks + DEPTH - 1:
            side += wl(nw)
            nw += 1
        interleave(a, mf, side)
    stamp(a)
    a("s_nop 7")
    a("s_lshl_b32 s22, s3, 14")
    a("v_add_u32 v6, s22, v5")
    for m in range(4):
        for n in range(4):
            a("ds_write_b128 v6, %s offset:%d" % (vr(ACC + (m * 4 + n) * 4), (m * 4 + n) * 1024))
    a("s_waitcnt lgkmcnt(0)")
    a("s_barrier")
    a("s_lshl_b32 s22, s3, 12")
    a("v_add_u32 v6, s22, v5")
    RB = 80
    for w in range(4):
        for n in range(4):
            a("ds_read_b128 %s, v6 offset:%d" % (vr(RB + (w * 4 + n) * 4), w * 16384 + n * 1024))
    a("s_waitcnt lgkmcnt(8)")
    for k in range(0, 16, 2):
        a("v_pk_add_f32 %s, %s, %s" % (vr(RB + k, 2), vr(RB + k, 2), vr(RB + 16 + k, 2)))
    a("s_waitcnt lgkmcnt(0)")
    for k in range(0, 16, 2):
        a("v_pk_add_f32 %s, %s, %s" % (vr(RB + 32 + k, 2), vr(RB + 32 + k, 2), vr(RB + 48 + k, 2)))
    for k in range(0, 16, 2):
        a("v_pk_add_f32 %s, %s, %s" % (vr(RB + k, 2), vr(RB + k, 2), vr(RB + 32 + k, 2)))
    T = 16
    for q in range(8):
        a("v_cvt_pk_bf16_f32 v%d, v%d, v%d" % (T + q, RB + 2 * q, RB + 2 * q + 1))
    for q in range(8):
        a("v_lshlrev_b32 v%d, 16, v%d" % (32 + 2 * q, T + q))
        a("v_and_b32 v%d, 0xffff0000, v%d" % (33 + 2 * q, T + q))
        a("v_lshlrev_b32 v%d, 16, v%d" % (48 + 2 * q, RX + q))
        a("v_and_b32 v%d, 0xffff0000, v%d" % (49 + 2 * q, RX + q))
    for q in range(8):
        a("v_pk_add_f32 %s, %s, %s" % (vr(32 + 2 * q, 2), vr(32 + 2 * q, 2), vr(48 + 2 * q, 2)))
    for q in range(8):
        a("v_cvt_pk_bf16_f32 v%d, v%d, v%d" % (24 + q, 32 + 2 * q, 33 + 2 * q))
    if not final:
        a("buffer_store_dwordx4 %s, v5, s[4:7], s24 offen" % vr(24) + SC)
        a("buffer_store_dwordx4 %s, v5, s[4:7], s24 offen offset:1024" % vr(28) + SC)
        a("v_mov_b32 v64, 0")
        a("v_mov_b32 v65, 0")
        a("v_mov_b32 v66, 0")
        a("v_mov_b32 v67, 0")
        for q in range(0, 8, 2):
            a("v_dot2c_f32_bf16 v64, s40, v%d" % (24 + q))
            a("v_dot2c_f32_bf16 v65, v%d, v%d" % (24 + q, 24 + q))
            a("v_dot2c_f32_bf16 v66, s40, v%d" % (25 + q))
            a("v_dot2c_f32_bf16 v67, v%d, v%d" % (25 + q, 25 + q))
        a("s_lshl_b32 s22, s20, 7")
        a("s_lshl_b32 s23, s11, 14")
        a("s_add_u32 s22, s22, s23")
        a("s_add_u32 s22, s22, 0x%x" % STP(xout // 0x200000))
        a("v_lshlrev_b32 v6, 3, v3")
        a("v_pk_add_f32 v[64:65], v[64:65], v[66:67]")
        reduce_g_multi(a, [64, 65], [66, 67])
        a("buffer_store_dwordx2 v[64:65], v6, s[4:7], s22 offen" + SC)
        sync_signal(a, bar_off(L, sig_k))
    else:
        a("s_lshl_b32 s22, s20, 4")
        a("v_add_u32 v6, s22, v3")
        a("v_mul_u32_u24 v6, 896, v6")
        a("v_lshlrev_b32 v7, 3, v4")
        a("v_add_u32 v6, v6, v7")
        a("s_lshl_b32 s22, s11, 7")
        for p in range(2):
            a("buffer_store_dwordx2 %s, v6, s[32:35], s22 offen offset:%d" % (vr(24 + p * 4, 2), p * 64))
            a("buffer_store_dwordx2 %s, v6, s[32:35], s22 offen offset:%d" % (vr(26 + p * 4, 2), p * 64 + 32))


def phase_gateup(a, L):
    a.reset_counters()
    stamp(a)
    xin = XF(2 * L + 1)
    a("s_lshl_b32 s12, s36, 3")
    a("s_lshl_b32 s13, s3, 1")
    a("s_add_u32 s12, s12, s13")
    a("s_mul_i32 s14, s12, %d" % (14 * 1024))
    a("s_add_u32 s14, s14, 0x%x" % xin)
    a("s_add_u32 s15, s14, %d" % (14 * 1024))
    a("s_lshl_b32 s16, s3, 11")
    a("s_lshl_b32 s17, s37, 2")
    a("s_add_u32 s17, s17, s3")
    a("s_mul_i32 s18, s17, %d" % (56 * 1024))
    a("s_add_u32 s18, s18, 0x%x" % WGUF)
    a("v_add_u32 v7, 0x10000, v5")
    CSB = 200
    ST = 192
    SL = 248
    a("s_lshl_b32 s23, s17, 7")
    a("s_add_u32 s24, s23, 0x%x" % CS_U)
    a("s_add_u32 s23, s23, 0x%x" % CS_G)
    a("v_lshlrev_b32 v6, 4, v4")
    for q in range(4):
        cb_ = CSB if q == 0 else 64 + (q - 1) * 16
        for mat in range(2):
            for p in range(2):
                a("@vm:cs")
                a("buffer_load_dwordx4 %s, v6, s[4:7], s%d offen offset:%d" % (vr(cb_ + (mat * 2 + p) * 4), 23 + mat, p * 64))
        a("s_add_u32 s23, s23, 0x8000")
        a("s_add_u32 s24, s24, 0x8000")

    def al(ks):
        g = []
        for m in range(2):
            g.append(["s_add_u32 s19, s16, %d" % ((ks * 8 + m) * 1024), "s_mov_b32 m0, s19", "s_add_u32 s25, s%d, %d" % (14 + m, ks * 1024),
                      "@vm:k%d" % ks, "buffer_load_dwordx4 v5, s[4:7], s25 offen" + SC + " lds"])
        return g

    def wl(ks):
        g = []
        for f in range(4):
            g.append(["@vm:k%d" % ks, "buffer_load_dwordx4 %s, v5, s[4:7], s18 offen offset:%d" % (ar((ks * 4 + f) * 4), f * 1024)])
        g[-1] = g[-1] + ["s_add_u32 s18, s18, 4096"]
        return g
    PW = 6
    pre = [g for ks in range(PW) for g in wl(ks)]
    pre_block(a, pre, 0)
    sync_wait(a, bar_off(L, 1), 14)
    pre_block(a, pre, 1)
    stamp(a)
    stats_load(a, 12, SL, 40, "st", STP(2 * L + 1))
    PD = 6
    for ks in range(PD):
        for g in al(ks):
            for l in g:
                a(l)
    a("@vmwait:st")
    stats_finish(a, SL, ST, [42, 43, 44, 45], 38, 39)
    for q in range(3):
        for k in range(0, 16, 2):
            a("v_pk_add_f32 %s, %s, %s" % (vr(CSB + k, 2), vr(CSB + k, 2), vr(64 + q * 16 + k, 2)))
    a("s_lshl_b32 s23, s3, 8")
    a("s_add_u32 s23, s23, 114688")
    a("v_lshlrev_b32 v6, 3, v3")
    a("v_add_u32 v46, s23, v6")
    a("v_mov_b32 v48, v%d" % ST)
    a("v_mov_b32 v49, v%d" % (ST + 2))
    a("v_mov_b32 v50, v%d" % (ST + 1))
    a("v_mov_b32 v51, v%d" % (ST + 3))
    a("ds_write_b64 v46, v[48:49]")
    a("ds_write_b64 v46, v[50:51] offset:128")
    a("s_waitcnt lgkmcnt(0)")
    a("@vmwait:k0")
    a("s_barrier")
    stamp(a)
    ACC = 64
    ABUF = [8, 216]

    def lda(ks):
        g = []
        for mt in range(8):
            off = (ks * 8 + mt) * 1024
            if off < 0x10000:
                g.append(["@lg:a%d_%d" % (ks, mt), "ds_read_b128 %s, v5 offset:%d" % (vr(ABUF[ks & 1] + mt * 4), off)])
            else:
                g.append(["@lg:a%d_%d" % (ks, mt), "ds_read_b128 %s, v7 offset:%d" % (vr(ABUF[ks & 1] + mt * 4), off - 0x10000)])
        return g
    for g in lda(0):
        for l in g:
            a(l)
    for ks in range(14):
        ab = ABUF[ks & 1]
        mf = []
        for mt in range(8):
            for f in range(4):
                acc = ACC + (mt * 4 + f) * 4
                pre = "@lgwait:a%d_%d\n" % (ks, mt) if f == 0 else ""
                mf.append(pre + "v_mfma_f32_16x16x32_bf16 %s, %s, %s, %s" % (vr(acc), ar((ks * 4 + f) * 4), vr(ab + mt * 4), "0" if ks == 0 else vr(acc)))
        side1 = (al(ks + PD) if ks + PD < 14 else []) + (wl(ks + PW) if ks + PW < 14 else [])
        interleave(a, mf[:16], side1)
        if ks + 1 < 14:
            a("@vmwait:k%d" % (ks + 1))
            a("s_barrier")
        side2 = lda(ks + 1) if ks + 1 < 14 else []
        interleave(a, mf[16:], side2)
    stamp(a)
    a("v_add_u32 v8, 114688, v6")
    for mt in range(8):
        a("ds_read_b64 %s, v8 offset:%d" % (vr(16 + mt * 2, 2), mt * 128))
    a("s_lshl_b32 s12, s36, 3")
    a("s_mul_i32 s12, s12, %d" % (56 * 1024))
    a("s_lshl_b32 s13, s17, 10")
    a("s_add_u32 s12, s12, s13")
    a("s_add_u32 s12, s12, 0x%x" % HF(L))
    a("s_waitcnt lgkmcnt(0)")
    for mt in range(8):
        nm = 16 + mt * 2
        rs = nm + 1
        a("v_mul_f32 v%d, v%d, v%d" % (rs, rs, rs))
        for p in range(2):
            g = ACC + (mt * 4 + p) * 4
            u = ACC + (mt * 4 + 2 + p) * 4
            for r in range(0, 4, 2):
                a("v_pk_fma_f32 %s, %s, %s, %s op_sel_hi:[0,1,1]" % (vr(g + r, 2), vr(nm, 2), vr(CSB + p * 4 + r, 2), vr(g + r, 2)))
                a("v_pk_fma_f32 %s, %s, %s, %s op_sel_hi:[0,1,1]" % (vr(u + r, 2), vr(nm, 2), vr(CSB + 8 + p * 4 + r, 2), vr(u + r, 2)))
        for p in range(2):
            g = ACC + (mt * 4 + p) * 4
            u = ACC + (mt * 4 + 2 + p) * 4
            for r in range(0, 4, 2):
                a("v_pk_mul_f32 %s, %s, %s" % (vr(g + r, 2), vr(g + r, 2), vr(u + r, 2)))
        for p in range(2):
            g = ACC + (mt * 4 + p) * 4
            for r in range(0, 4, 2):
                a("v_pk_mul_f32 %s, %s, %s op_sel:[0,1] op_sel_hi:[1,1]" % (vr(g + r, 2), vr(g + r, 2), vr(nm, 2)))
        d = 32 + (mt & 3) * 4
        for p in range(2):
            g = ACC + (mt * 4 + p) * 4
            a("v_cvt_pk_bf16_f32 v%d, v%d, v%d" % (d + 2 * p, g, g + 1))
            a("v_cvt_pk_bf16_f32 v%d, v%d, v%d" % (d + 2 * p + 1, g + 2, g + 3))
        a("buffer_store_dwordx4 %s, v5, s[4:7], s12 offen" % vr(d) + SC)
        a("s_add_u32 s12, s12, %d" % (56 * 1024))
    sync_signal(a, bar_off(L, 2))


def gen_mega(a):
    name = "mega_kernel"
    kernel_begin(a, name)
    a("s_cmp_ge_u32 s2, 256")
    a("s_cbranch_scc1 L_mega_end")
    ws_srd(a, 4)
    a("s_load_dwordx2 s[32:33], s[0:1], 56")
    a("s_mov_b32 s34, %d" % OUT_BYTES)
    a("s_mov_b32 s35, 0x20000")
    lane_setup(a)
    a("s_and_b32 s8, s2, 7")
    a("s_lshr_b32 s9, s2, 3")
    a("s_lshl_b32 s36, s8, 1")
    a("s_lshr_b32 s10, s9, 4")
    a("s_add_u32 s36, s36, s10")
    a("s_and_b32 s37, s9, 15")
    a("s_mov_b32 s38, %s" % INV448)
    a("s_mov_b32 s39, %s" % EPS)
    a("s_mov_b32 s40, %s" % ONES_BF)
    a("s_waitcnt lgkmcnt(0)")
    for L in range(2):
        phase_qkv(a, L)
        stamp_flush(a, 4)
        phase_attn(a, L)
        stamp_flush(a, 4)
        a("s_cmp_ge_u32 s37, 14")
        a("s_cbranch_scc1 L_mega_skip%d" % L)
        phase_gemm_res(a, L, 16, OF(L), WOF, XF(2 * L), XF(2 * L + 1), False, 0, 16, 1)
        stamp_flush(a, 4)
        phase_gateup(a, L)
        stamp_flush(a, 4)
        phase_gemm_res(a, L, 56, HF(L), WDF, XF(2 * L + 1), XF(2 * L + 2) if L == 0 else 0, L == 1, 2, 14, 3)
        stamp_flush(a, 4)
        a.label("L_mega_skip%d" % L)
    a.label("L_mega_end")
    a("s_endpgm")
    kernel_desc(name, 512, 60, 256)


def main():
    global STAMP
    if len(sys.argv) > 2 and sys.argv[2] == "stamp":
        STAMP = True
    a = Asm()
    gen_prep(a)
    gen_mega(a)
    hdr = open("cdna_kernels/%s.s.ref" % NAME).read().split("\n")
    head = [l for l in hdr if l.startswith(";") and "@launch" not in l and "Override launch" not in l and "grid=ceil" not in l]
    launches = [
        ("prep_kernel", 368, 256, PREP_LDS),
        ("mega_kernel", 256, 256, 114688 + 1024),
    ]
    out = "\n".join(head) + "\n"
    for (k, g, b, l) in launches:
        out += "; @launch kernel=%s grid=(%d,1,1) block=(%d,1,1) lds=%d\n" % (k, g, b, l)
    out += '.amdgcn_target "amdgcn-amd-amdhsa--gfx950"\n.text\n'
    out += a.text()
    out += '.section .rodata,"a"\n'
    for kd in KDS:
        out += ".p2align 6\n" + kd + "\n"
    path = sys.argv[1] if len(sys.argv) > 1 else "cdna_kernels/%s.s" % NAME
    open(path, "w").write(out)
    print("wrote", path, len(out))


if __name__ == "__main__":
    main()
```

```python
import sys, struct, math

NAME = "interleave_layers__sliding_block__glu_gated_bilinear__prompt"

WQKVF = 0x800000
WOF = 0xA00000
WGUF = 0xB00000
WDF = 0xF00000
CS = 0x1100000
CS_G = CS + 8192
CS_U = CS + 16384
LBASE = 0x1400000
LSTR = 0x1800000
def XF(n): return (n >> 1) * LSTR + (n & 1) * 0x200000
def STP(n): return (n >> 1) * LSTR + 0x400000 + (n & 1) * 0x20000
SYNC = 0x440000
def QF(L): return 0x500000
def KF(L): return 0x700000
def VF(L): return 0x900000
def OF(L): return 0xB00000
def HF(L): return 0xD00000
WS_SIZE = 0x6000000
SC = " sc0 sc1"

OUT_BYTES = 2048 * 448 * 2
INV448 = "0x3b124925"
EPS = "0x3727c5ac"
ONES_BF = "0x3f803f80"


class Asm:
    def __init__(self):
        self.lines = []
        self.uid = 0
        self.vm = []
        self.lg = []

    def reset_counters(self):
        self.vm = []
        self.lg = []

    def __call__(self, s):
        for l in s.strip("\n").split("\n"):
            l = l.strip()
            if l.startswith("@vm:"):
                self.vm.append(l[4:])
            elif l.startswith("@lg:"):
                self.lg.append(l[4:])
            elif l.startswith("@vmwait:"):
                tag = l[8:]
                idx = max(i for i, t in enumerate(self.vm) if t == tag)
                n = len(self.vm) - 1 - idx
                self.lines.append("    s_waitcnt vmcnt(%d)" % min(n, 63))
            elif l.startswith("@lgwait:"):
                tag = l[8:]
                idx = max(i for i, t in enumerate(self.lg) if t == tag)
                n = len(self.lg) - 1 - idx
                self.lines.append("    s_waitcnt lgkmcnt(%d)" % min(n, 15))
            else:
                self.lines.append("    " + l)

    def label(self, l):
        self.lines.append(l + ":")

    def raw(self, s):
        self.lines.append(s)

    def newlabel(self, base):
        self.uid += 1
        return "L_%s_%d" % (base, self.uid)

    def text(self):
        return "\n".join(self.lines) + "\n"


def vr(b, n=4, k="v"):
    return "%s[%d:%d]" % (k, b, b + n - 1)


def ar(b, n=4):
    return vr(b, n, "a")


def kernel_begin(a, name):
    a.raw(".globl %s" % name)
    a.raw(".p2align 8")
    a.raw(".type %s,@function" % name)
    a.label(name)
    a.reset_counters()


KDS = []
STAMP = False
STAMP_BASE = 0x5D00000
_stamp_n = [0]
_kern_idx = [0]


def kernel_desc(name, vgpr, sgpr, accum):
    if STAMP:
        sgpr = 96
    KDS.append(""".amdhsa_kernel %s
  .amdhsa_next_free_vgpr %d
  .amdhsa_next_free_sgpr %d
  .amdhsa_accum_offset %d
  .amdhsa_group_segment_fixed_size 0
  .amdhsa_kernarg_size 80
  .amdhsa_user_sgpr_count 2
  .amdhsa_user_sgpr_kernarg_segment_ptr 1
  .amdhsa_system_sgpr_workgroup_id_x 1
.end_amdhsa_kernel""" % (name, vgpr, sgpr, accum))


def stamp(a, clk=False):
    if not STAMP:
        return
    k = _stamp_n[0]
    _stamp_n[0] += 1
    a("%s s[%d:%d]" % ("s_memtime" if clk else "s_memrealtime", 60 + 2 * k, 61 + 2 * k))


def stamp_flush(a, srd, wpw=4):
    if not STAMP:
        return
    n = _stamp_n[0]
    a("s_memrealtime s[%d:%d]" % (60 + 2 * n, 61 + 2 * n))
    n += 1
    a("s_waitcnt lgkmcnt(0) vmcnt(0)")
    a("s_mul_i32 s58, s2, %d" % wpw)
    a("s_add_u32 s58, s58, s3")
    a("s_add_u32 s58, s58, %d" % (_kern_idx[0] * 4096))
    a("s_lshl_b32 s58, s58, 6")
    a("s_add_u32 s58, s58, 0x%x" % STAMP_BASE)
    a("v_mov_b32 v1, 0")
    for k in range(n):
        a("v_mov_b32 v2, s%d" % (60 + 2 * k))
        a("buffer_store_dword v2, v1, s[%d:%d], s58 offen offset:%d" % (srd, srd + 3, 4 * k))
    _stamp_n[0] = 0
    _kern_idx[0] += 1


def ws_srd(a, s):
    a("s_load_dwordx2 s[%d:%d], s[0:1], 72" % (s, s + 1))
    a("s_mov_b32 s%d, 0x%x" % (s + 2, WS_SIZE))
    a("s_mov_b32 s%d, 0x20000" % (s + 3))


def lane_setup(a):
    a("v_lshrrev_b32 v1, 6, v0")
    a("v_and_b32 v2, 63, v0")
    a("v_and_b32 v3, 15, v0")
    a("v_bfe_u32 v4, v0, 4, 2")
    a("v_readfirstlane_b32 s3, v1")
    a("v_lshlrev_b32 v5, 4, v2")


def reduce_g(a, x, t, op="v_add_f32"):
    a("v_mov_b32 v%d, v%d" % (t, x))
    a("s_nop 1")
    a("v_permlane16_swap_b32 v%d, v%d" % (x, t))
    a("%s v%d, v%d, v%d" % (op, x, x, t))
    a("v_mov_b32 v%d, v%d" % (t, x))
    a("s_nop 1")
    a("v_permlane32_swap_b32 v%d, v%d" % (x, t))
    a("%s v%d, v%d, v%d" % (op, x, x, t))


def reduce_g_multi(a, xs, ts, op="v_add_f32"):
    for perm in ("v_permlane16_swap_b32", "v_permlane32_swap_b32"):
        for x, t in zip(xs, ts):
            a("v_mov_b32 v%d, v%d" % (t, x))
        if len(xs) < 3:
            a("s_nop 1")
        for x, t in zip(xs, ts):
            a("%s v%d, v%d" % (perm, x, t))
        for x, t in zip(xs, ts):
            a("%s v%d, v%d, v%d" % (op, x, x, t))


def ln_stats(a, s1, s2, t, sinv, seps):
    a("v_mul_f32 v%d, s%d, v%d" % (s1, sinv, s1))
    a("v_mul_f32 v%d, s%d, v%d" % (s2, sinv, s2))
    a("v_fma_f32 v%d, -v%d, v%d, v%d" % (s2, s1, s1, s2))
    a("v_max_f32 v%d, 0, v%d" % (s2, s2))
    a("v_cvt_pk_bf16_f32 v%d, v%d, v%d" % (t, s1, s2))
    a("v_lshlrev_b32 v%d, 16, v%d" % (s1, t))
    a("v_xor_b32 v%d, 0x80000000, v%d" % (s1, s1))
    a("v_and_b32 v%d, 0xffff0000, v%d" % (s2, t))
    a("v_add_f32 v%d, s%d, v%d" % (s2, seps, s2))
    a("v_cvt_pk_bf16_f32 v%d, v%d, v%d" % (s2, s2, s2))
    a("v_and_b32 v%d, 0xffff0000, v%d" % (s2, s2))
    a("v_sqrt_f32 v%d, v%d" % (s2, s2))
    a("s_nop 0")
    a("v_cvt_pk_bf16_f32 v%d, v%d, v%d" % (s2, s2, s2))
    a("v_and_b32 v%d, 0xffff0000, v%d" % (s2, s2))
    a("v_rcp_f32 v%d, v%d" % (s2, s2))
    a("s_nop 0")


def interleave(a, main, side, start=0, end=None):
    n = len(main)
    if end is None:
        end = n
    span = max(end - start, 1)
    k = len(side)
    pos = [start + (i * span) // k for i in range(k)] if k else []
    j = 0
    for i, m in enumerate(main):
        while j < k and pos[j] <= i:
            for l in side[j]:
                a(l)
            j += 1
        a(m)
    while j < k:
        for l in side[j]:
            a(l)
        j += 1


def stats_load(a, smt, vdst, vtmp, tag, stp):
    a("v_lshlrev_b32 v%d, 14, v4" % vtmp)
    a("v_lshl_add_u32 v%d, v3, 3, v%d" % (vtmp, vtmp))
    a("v_add_u32 v%d, 0x10000, v%d" % (vtmp + 1, vtmp))
    a("v_cmp_gt_u32 vcc, 3, v4")
    a("v_mov_b32 v%d, 0x40000000" % (vdst))
    a("s_lshl_b32 s30, s%d, 7" % smt)
    a("s_add_u32 s30, s30, 0x%x" % stp)
    a("v_cndmask_b32 v%d, v%d, v%d, vcc" % (vtmp + 1, vdst, vtmp + 1))
    for m in range(2):
        a("@vm:" + tag)
        a("buffer_load_dwordx2 %s, v%d, s[52:55], s30 offen offset:%d" % (vr(vdst + m * 4, 2), vtmp, m * 128))
        a("@vm:" + tag)
        a("buffer_load_dwordx2 %s, v%d, s[52:55], s30 offen offset:%d" % (vr(vdst + m * 4 + 2, 2), vtmp + 1, m * 128))


def stats_finish(a, vsrc, ST, tmps, sinv, seps):
    for m in range(2):
        a("v_add_f32 v%d, v%d, v%d" % (ST + m, vsrc + m * 4, vsrc + m * 4 + 2))
        a("v_add_f32 v%d, v%d, v%d" % (ST + 2 + m, vsrc + m * 4 + 1, vsrc + m * 4 + 3))
    reduce_g_multi(a, [ST, ST + 1, ST + 2, ST + 3], tmps)
    for m in range(2):
        ln_stats(a, ST + m, ST + 2 + m, tmps[0], sinv, seps)


PREP_LDS = 4 * 9216 + 2048


def gen_prep(a):
    name = "prep_kernel"
    kernel_begin(a, name)
    a("s_cmp_ge_u32 s2, 368")
    a("s_cbranch_scc1 L_prep_end2")
    stamp(a)
    a("s_load_dwordx16 s[8:23], s[0:1], 0")
    a("s_load_dwordx2 s[28:29], s[0:1], 72")
    lane_setup(a)
    a("s_mov_b32 s30, 0x%x" % WS_SIZE)
    a("s_mov_b32 s31, 0x20000")
    a("s_mov_b32 s7, 0x20000")
    a("s_mov_b32 s39, %s" % ONES_BF)
    a("v_mov_b32 v15, 0x40000000")
    a("v_lshrrev_b32 v14, 2, v3")
    a("s_lshr_b32 s55, s2, 2")
    a("s_and_b32 s53, s2, 3")
    a("s_lshl_b32 s53, s53, 2")
    a("s_add_u32 s53, s53, s3")
    a("s_waitcnt lgkmcnt(0)")
    a("s_cmp_ge_u32 s2, 240")
    a("s_cbranch_scc1 L_prep_x")
    a("s_cmp_ge_u32 s55, 56")
    a("s_cbranch_scc1 L_prep_wo")
    a("s_cmp_ge_u32 s55, 40")
    a("s_cbranch_scc1 L_prep_wd")
    a("s_cmp_ge_u32 s55, 12")
    a("s_cbranch_scc1 L_prep_gu")
    a("s_lshr_b32 s40, s55, 2")
    a("s_and_b32 s41, s55, 3")
    a("s_mov_b32 s4, s10")
    a("s_mov_b32 s5, s11")
    a("s_mov_b32 s6, %d" % (448 * 1344 * 2))
    a("s_mov_b32 s32, 2688")
    a("s_mov_b32 s33, %d" % (32 * 2688))
    a("s_mov_b32 s38, 0")
    a("s_mov_b32 s35, 6144")
    a("s_mov_b32 s36, 14")
    a("s_mov_b32 s50, %d" % (84 * 1024))
    a("s_mov_b32 s51, 1024")
    a("s_mov_b32 s52, 8")
    a("s_lshl_b32 s42, s41, 2")
    a("v_add_u32 v6, s42, v14")
    a("v_mul_u32_u24 v7, 28, v6")
    a("v_and_b32 v8, 3, v3")
    a("v_lshl_add_u32 v7, v8, 3, v7")
    a("s_mul_i32 s42, s40, 448")
    a("v_add_u32 v7, s42, v7")
    a("v_lshlrev_b32 v7, 1, v7")
    a("v_mul_u32_u24 v8, %d, v4" % (4 * 2688))
    a("v_add_u32 v7, v7, v8")
    a("v_add_u32 v9, %d, v7" % (16 * 2688))
    a("s_mul_i32 s34, s41, %d" % (4 * 84 * 1024))
    a("s_lshl_b32 s42, s40, 11")
    a("s_add_u32 s34, s34, s42")
    a("s_add_u32 s34, s34, 0x%x" % WQKVF)
    a("s_lshl_b32 s42, s41, 2")
    a("v_add_u32 v11, s42, v4")
    a("v_mul_u32_u24 v11, 384, v11")
    a("v_lshl_add_u32 v11, v3, 3, v11")
    a("s_lshl_b32 s49, s40, 7")
    a("s_add_u32 s49, s49, 0x%x" % CS)
    a("s_mov_b32 s48, 1")
    a("s_mov_b32 s37, 0")
    a("s_branch L_prep_go")
    a.label("L_prep_gu")
    a("s_sub_u32 s40, s55, 12")
    a("s_cmp_ge_u32 s40, 14")
    a("s_cselect_b32 s41, 1, 0")
    a("s_cselect_b32 s4, s18, s16")
    a("s_cselect_b32 s5, s19, s17")
    a("s_mul_i32 s42, s41, 14")
    a("s_sub_u32 s40, s40, s42")
    a("s_mov_b32 s6, %d" % (448 * 1792 * 2))
    a("s_mov_b32 s32, 3584")
    a("s_mov_b32 s33, %d" % (32 * 3584))
    a("s_mov_b32 s38, 0")
    a("s_mov_b32 s35, 4096")
    a("s_mov_b32 s36, 14")
    a("s_mov_b32 s50, %d" % (56 * 1024))
    a("s_mov_b32 s51, 1024")
    a("s_mov_b32 s52, 8")
    a("s_lshl_b32 s42, s40, 8")
    a("v_lshl_add_u32 v7, v3, 4, s42")
    a("v_mul_u32_u24 v8, %d, v4" % (4 * 3584))
    a("v_add_u32 v7, v7, v8")
    a("v_add_u32 v9, %d, v7" % (16 * 3584))
    a("s_mul_i32 s34, s40, %d" % (4 * 56 * 1024))
    a("s_lshl_b32 s42, s41, 11")
    a("s_add_u32 s34, s34, s42")
    a("s_add_u32 s34, s34, 0x%x" % WGUF)
    a("v_lshlrev_b32 v11, 3, v2")
    a("s_lshl_b32 s49, s40, 9")
    a("s_lshl_b32 s42, s41, 13")
    a("s_add_u32 s49, s49, s42")
    a("s_add_u32 s49, s49, 0x%x" % CS_G)
    a("s_mov_b32 s48, 0")
    a("s_mov_b32 s37, 0")
    a("s_branch L_prep_go")
    a.label("L_prep_wd")
    a("s_sub_u32 s40, s55, 40")
    a("s_and_b32 s41, s40, 3")
    a("s_lshr_b32 s40, s40, 2")
    a("s_mov_b32 s4, s20")
    a("s_mov_b32 s5, s21")
    a("s_mov_b32 s6, %d" % (1792 * 448 * 2))
    a("s_mov_b32 s32, 896")
    a("s_mov_b32 s33, %d" % (32 * 896))
    a("s_mul_i32 s38, s41, %d" % (14 * 32 * 896))
    a("s_mov_b32 s35, 1024")
    a("s_mov_b32 s36, 14")
    a("s_mov_b32 s50, %d" % (112 * 1024))
    a("s_mov_b32 s51, %d" % (56 * 1024))
    a("s_cmp_eq_u32 s40, 3")
    a("s_cselect_b32 s52, 4, 8")
    a("s_lshl_b32 s42, s40, 8")
    a("v_lshl_add_u32 v7, v3, 4, s42")
    a("v_mul_u32_u24 v8, %d, v4" % (4 * 896))
    a("v_add_u32 v7, v7, v8")
    a("v_add_u32 v9, %d, v7" % (16 * 896))
    a("s_mul_i32 s34, s40, %d" % (8 * 56 * 1024))
    a("s_mul_i32 s42, s41, %d" % (14 * 1024))
    a("s_add_u32 s34, s34, s42")
    a("s_add_u32 s34, s34, 0x%x" % WDF)
    a("s_mov_b32 s48, 0")
    a("s_mov_b32 s49, 0")
    a("s_mov_b32 s37, -1")
    a("v_mov_b32 v11, 0")
    a("s_branch L_prep_go")
    a.label("L_prep_wo")
    a("s_sub_u32 s40, s55, 56")
    a("s_mov_b32 s4, s12")
    a("s_mov_b32 s5, s13")
    a("s_mov_b32 s6, %d" % (448 * 448 * 2))
    a("s_mov_b32 s32, 896")
    a("s_mov_b32 s33, %d" % (28 * 896))
    a("s_mov_b32 s38, 0")
    a("s_mov_b32 s35, 1024")
    a("s_mov_b32 s36, 16")
    a("s_mov_b32 s50, %d" % (32 * 1024))
    a("s_mov_b32 s51, %d" % (16 * 1024))
    a("s_cmp_eq_u32 s40, 3")
    a("s_cselect_b32 s52, 4, 8")
    a("s_lshl_b32 s42, s40, 8")
    a("v_lshl_add_u32 v7, v3, 4, s42")
    a("v_mul_u32_u24 v8, %d, v4" % (4 * 896))
    a("v_add_u32 v7, v7, v8")
    a("v_add_u32 v9, %d, v7" % (16 * 896))
    a("v_cmp_gt_u32 vcc, 3, v4")
    a("s_lshl_b32 s34, s40, 17")
    a("s_add_u32 s34, s34, 0x%x" % WOF)
    a("s_mov_b32 s48, 0")
    a("s_mov_b32 s49, 0")
    a("s_mov_b32 s37, -1")
    a("v_mov_b32 v11, 0")
    a("v_cndmask_b32 v9, v15, v9, vcc")
    a.label("L_prep_go")
    a("v_and_b32 v8, 3, v3")
    a("v_cmp_ne_u32 s[56:57], 3, v8")
    CA = 16
    for e in range(8):
        a("v_mov_b32 v%d, 0" % (CA + e))
    a("s_cmp_ge_u32 s53, s36")
    a("s_cbranch_scc1 L_prep_cs")
    RB = 32
    a("s_mul_i32 s45, s53, s33")
    a("s_add_u32 s45, s45, s38")
    a("s_add_u32 s46, s45, s32")
    a("s_add_u32 s47, s46, s32")
    a("s_add_u32 s54, s47, s32")
    for j, sg in enumerate((45, 46, 47, 54)):
        a("buffer_load_dwordx4 %s, v7, s[4:7], s%d offen" % (vr(RB + j * 4), sg))
    for j, sg in enumerate((45, 46, 47, 54)):
        a("buffer_load_dwordx4 %s, v9, s[4:7], s%d offen" % (vr(RB + 16 + j * 4), sg))
    a("s_mul_i32 s44, s3, 9216")
    a("v_mul_u32_u24 v12, %d, v4" % (4 * 288))
    a("v_lshl_add_u32 v12, v3, 4, v12")
    a("v_add_u32 v12, s44, v12")
    a("v_lshl_add_u32 v13, v4, 2, v14")
    a("v_mul_u32_u24 v13, 288, v13")
    a("v_lshl_add_u32 v13, v8, 3, v13")
    a("v_add_u32 v13, s44, v13")
    a("s_waitcnt vmcnt(0)")
    a("s_cmp_eq_u32 s48, 0")
    a("s_cbranch_scc1 L_prep_nopad")
    for row in range(8):
        for d in (2, 3):
            r = RB + row * 4 + d
            a("v_cndmask_b32 v%d, 0, v%d, s[56:57]" % (r, r))
    a.label("L_prep_nopad")
    for j in range(4):
        a("ds_write_b128 v12, %s offset:%d" % (vr(RB + j * 4), j * 288))
        a("ds_write_b128 v12, %s offset:%d" % (vr(RB + 16 + j * 4), (16 + j) * 288))
    a("s_waitcnt lgkmcnt(0)")
    OB = 64
    for b in range(8):
        a("ds_read_b64_tr_b16 %s, v13 offset:%d" % (vr(OB + b * 4, 2), b * 32))
        a("ds_read_b64_tr_b16 %s, v13 offset:%d" % (vr(OB + b * 4 + 2, 2), b * 32 + 16 * 288))
    a("s_mul_i32 s45, s53, s35")
    a("s_add_u32 s45, s45, s34")
    a("s_waitcnt lgkmcnt(0)")
    for b in range(8):
        if b == 4:
            a("s_cmp_le_u32 s52, 4")
            a("s_cbranch_scc1 L_prep_end")
        if b & 1:
            a("s_add_u32 s46, s45, s51")
            a("buffer_store_dwordx4 %s, v5, s[28:31], s46 offen" % vr(OB + b * 4))
            a("s_add_u32 s45, s45, s50")
        else:
            a("buffer_store_dwordx4 %s, v5, s[28:31], s45 offen" % vr(OB + b * 4))
        for qq in range(4):
            a("v_dot2c_f32_bf16 v%d, s39, v%d" % (CA + b, OB + b * 4 + qq))
    a.label("L_prep_cs")
    a("s_cmp_eq_u32 s37, -1")
    a("s_cbranch_scc1 L_prep_end")
    a("s_nop 3")
    reduce_g_multi(a, [CA + e for e in range(8)], [24 + e for e in range(8)])
    a("s_lshl_b32 s44, s3, 9")
    a("s_add_u32 s44, s44, %d" % (4 * 9216))
    a("v_lshl_add_u32 v24, v3, 2, s44")
    for b in range(8):
        a("ds_write_b32 v24, v%d offset:%d" % (CA + b, b * 64))
    a("s_waitcnt lgkmcnt(0)")
    a("s_barrier")
    a("s_cmp_lg_u32 s3, 0")
    a("s_cbranch_scc1 L_prep_end")
    a("v_lshlrev_b32 v24, 3, v2")
    a("v_add_u32 v24, %d, v24" % (4 * 9216))
    for w in range(4):
        a("ds_read_b64 %s, v24 offset:%d" % (vr(32 + 2 * w, 2), w * 512))
    a("s_and_b32 s44, s2, 3")
    a("s_lshl_b32 s44, s44, 15")
    a("s_add_u32 s49, s49, s44")
    a("s_waitcnt lgkmcnt(0)")
    a("v_pk_add_f32 v[32:33], v[32:33], v[34:35]")
    a("v_pk_add_f32 v[36:37], v[36:37], v[38:39]")
    a("v_pk_add_f32 v[32:33], v[32:33], v[36:37]")
    a("buffer_store_dwordx2 v[32:33], v11, s[28:31], s49 offen")
    a("s_branch L_prep_end")
    a.label("L_prep_x")
    a("s_sub_u32 s40, s2, 240")

    a("v_mov_b32 v16, 0")
    a("v_mov_b32 v17, 0")
    a("v_mov_b32 v18, 0")
    a("v_mov_b32 v19, 0")
    a("s_cmp_ge_u32 s40, 64")
    a("s_cselect_b32 s42, 0x%x, 0" % (LSTR - 64 * 1024))
    a("s_lshl_b32 s41, s40, 10")
    a("s_add_u32 s41, s41, s42")
    a("s_add_u32 s41, s41, 0x%x" % (LBASE + SYNC))
    a("buffer_store_dwordx4 v[16:19], v5, s[28:31], s41 offen")
    a.label("L_prep_x2")
    a("s_mov_b32 s4, s8")
    a("s_mov_b32 s5, s9")
    a("s_mov_b32 s6, %d" % OUT_BYTES)
    a("s_lshl_b32 s42, s40, 4")
    a("v_add_u32 v7, s42, v3")
    a("v_lshlrev_b32 v11, 3, v7")
    a("v_mul_u32_u24 v7, 896, v7")
    a("v_lshlrev_b32 v8, 3, v4")
    a("v_add_u32 v7, v7, v8")
    a("s_mul_i32 s34, s40, %d" % (14 * 1024))
    a("s_add_u32 s34, s34, 0x%x" % (LBASE + XF(0)))
    a("v_mov_b32 v60, 0")
    a("v_mov_b32 v61, 0")
    for q in range(4):
        lskip = a.newlabel("prep_xld")
        a("s_add_u32 s44, s3, %d" % (4 * q))
        a("s_cmp_ge_u32 s44, 14")
        a("s_cbranch_scc1 %s" % lskip)
        a("s_lshl_b32 s45, s44, 6")
        b = 32 + q * 4
        a("buffer_load_dwordx2 %s, v7, s[4:7], s45 offen" % vr(b, 2))
        a("buffer_load_dwordx2 %s, v7, s[4:7], s45 offen offset:32" % vr(b + 2, 2))
        a.label(lskip)
    a("s_waitcnt vmcnt(0)")
    for q in range(4):
        lskip = a.newlabel("prep_xst")
        a("s_add_u32 s44, s3, %d" % (4 * q))
        a("s_cmp_ge_u32 s44, 14")
        a("s_cbranch_scc1 %s" % lskip)
        a("s_lshl_b32 s45, s44, 10")
        a("s_add_u32 s45, s45, s34")
        b = 32 + q * 4
        a("buffer_store_dwordx4 %s, v5, s[28:31], s45 offen" % vr(b))
        for k in range(4):
            a("v_dot2c_f32_bf16 v60, s39, v%d" % (b + k))
            a("v_dot2c_f32_bf16 v61, v%d, v%d" % (b + k, b + k))
        a.label(lskip)
    a("s_nop 3")
    reduce_g_multi(a, [60, 61], [62, 63])
    a("s_lshl_b32 s45, s3, 14")
    a("s_add_u32 s45, s45, 0x%x" % (LBASE + STP(0)))
    a("buffer_store_dwordx2 v[60:61], v11, s[28:31], s45 offen")
    a("s_cmp_ge_u32 s3, 3")
    a("s_cbranch_scc1 L_prep_end")
    a("v_mov_b32 v62, 0")
    a("v_mov_b32 v63, 0")
    a("s_add_u32 s45, s45, 0x10000")
    a("buffer_store_dwordx2 v[62:63], v11, s[28:31], s45 offen")
    a.label("L_prep_end")
    stamp_flush(a, 28)
    a.label("L_prep_end2")
    a("s_endpgm")
    kernel_desc(name, 96, 60, 96)


def sync_signal(a, off_lines):
    for l in off_lines:
        a(l)
    a("s_waitcnt vmcnt(0)")
    a("s_barrier")
    l = a.newlabel("sig")
    a("s_cmp_lg_u32 s3, 0")
    a("s_cbranch_scc1 %s" % l)
    a("s_mov_b64 exec, 1")
    a("v_mov_b32 v254, 1")
    a("v_mov_b32 v255, 0")
    a("buffer_atomic_add v254, v255, s[52:55], s41 offen sc1")
    a("s_mov_b64 exec, -1")
    a.label(l)


def sync_wait(a, off_lines, n, barrier=True):
    for l in off_lines:
        a(l)
    ld = a.newlabel("wdone")
    ll = a.newlabel("wloop")
    a("s_cmp_lg_u32 s3, 0")
    a("s_cbranch_scc1 %s" % ld)
    a("s_mov_b32 s42, 0x40000")
    a("v_mov_b32 v255, 0")
    a.label(ll)
    a("buffer_load_dword v254, v255, s[52:55], s41 offen sc0 sc1")
    a("s_waitcnt vmcnt(0)")
    a("v_readfirstlane_b32 s43, v254")
    a("s_cmp_ge_u32 s43, %d" % n)
    a("s_cbranch_scc1 %s" % ld)
    a("s_sub_u32 s42, s42, 1")
    a("s_cmp_eq_u32 s42, 0")
    a("s_cbranch_scc1 %s" % ld)
    a("s_sleep 1")
    a("s_branch %s" % ll)
    a.label(ld)
    if barrier:
        a("s_barrier")


def bar_off(L, k):
    return ["s_lshl_b32 s41, s36, 9", "s_add_u32 s41, s41, 0x%x" % (SYNC + L * LSTR + k * 128)]


def kv_off(L, drb):
    return ["s_sub_u32 s41, s36, %d" % drb, "s_lshl_b32 s41, s41, 4", "s_add_u32 s41, s41, s37", "s_lshl_b32 s41, s41, 7",
            "s_add_u32 s41, s41, 0x%x" % (SYNC + 0x8000)]


def phase_qkv(a, L):
    a.reset_counters()
    stamp(a)
    xin = XF(2 * L)
    a("s_lshl_b32 s12, s36, 3")
    a("s_lshl_b32 s13, s3, 1")
    a("s_add_u32 s12, s12, s13")
    a("s_mul_i32 s14, s12, %d" % (14 * 1024))
    a("s_add_u32 s14, s14, 0x%x" % xin)
    a("s_add_u32 s15, s14, %d" % (14 * 1024))
    a("s_mul_i32 s16, s37, %d" % (84 * 1024))
    a("s_add_u32 s16, s16, 0x%x" % WQKVF)
    a("s_mul_i32 s17, s3, %d" % (3 * 1024))
    a("s_add_u32 s16, s16, s17")
    a("v_add_u32 v8, 61440, v5")
    AB = 16
    CSB = 228
    ST = 224
    SL = 244
    a("s_mul_i32 s25, s37, 384")
    a("s_add_u32 s25, s25, 0x%x" % CS)
    a("v_lshlrev_b32 v10, 4, v4")
    a("v_lshlrev_b32 v11, 2, v3")
    CSV = 252
    for q in range(4):
        cb_ = CSB if q == 0 else 128 + (q - 1) * 20
        cv_ = CSV if q == 0 else 128 + (q - 1) * 20 + 16
        for nt in range(4):
            a("@vm:cs")
            a("buffer_load_dwordx4 %s, v10, s[4:7], s25 offen offset:%d" % (vr(cb_ + nt * 4), nt * 64))
        for nt in range(4, 6):
            a("@vm:cs")
            a("buffer_load_dword v%d, v11, s[4:7], s25 offen offset:%d" % (cv_ + nt - 4, nt * 64))
        a("s_add_u32 s25, s25, 0x8000")

    def w_loads(c):
        g = []
        first = ["s_add_u32 s18, s17, %d" % (c * 12 * 1024), "s_mov_b32 m0, s18", "s_add_u32 s19, s16, %d" % (c * 12 * 1024)]
        for j in range(3):
            g.append((first if j == 0 else []) + ["@vm:c%d" % c, "buffer_load_dwordx4 v5, s[4:7], s19 offen offset:%d lds" % (j * 1024)])
        return g

    def a_loads(c):
        g = []
        pre = ["s_add_u32 s23, s14, %d" % (c * 2048), "s_add_u32 s24, s15, %d" % (c * 2048)]
        for k2 in range(2):
            ks = 2 * c + k2
            for m in range(2):
                g.append((pre if (k2 == 0 and m == 0) else []) + ["@vm:c%d" % c,
                         "buffer_load_dwordx4 %s, v5, s[52:55], s%d offen offset:%d" % (vr(AB + (m * 14 + ks) * 4), 23 + m, k2 * 1024)])
        return g
    for c in range(7):
        for g in w_loads(c):
            for l in g:
                a(l)
    a("s_cmp_eq_u32 s51, 0")
    a("s_cbranch_scc1 L_qkv_nowait")
    sync_wait(a, bar_off(0, 3), 14)
    a.label("L_qkv_nowait")
    stamp(a)
    stats_load(a, 12, SL, 6, "st", STP(2 * L))
    PD = 4
    for c in range(PD):
        for g in a_loads(c):
            for l in g:
                a(l)
    a("@vmwait:st")
    stats_finish(a, SL, ST, [12, 13, 14, 15], 38, 39)
    for q in range(3):
        for k in range(0, 16, 2):
            a("v_pk_add_f32 %s, %s, %s" % (vr(CSB + k, 2), vr(CSB + k, 2), vr(128 + q * 20 + k, 2)))
        a("v_pk_add_f32 %s, %s, %s" % (vr(CSV, 2), vr(CSV, 2), vr(128 + q * 20 + 16, 2)))
    a("@vmwait:c0")
    a("s_barrier")
    stamp(a)
    ACC = 128
    BB = 176

    def ldb(ks):
        return [["@lg:b%d_%d" % (ks, nt), "ds_read_b128 %s, v%d offset:%d" % (vr(BB + (ks & 1) * 24 + nt * 4), 5 if ks < 10 else 8,
                 ((ks * 6 + nt) * 1024) - (0 if ks < 10 else 61440))] for nt in range(6)]
    for g in ldb(0):
        for l in g:
            a(l)
    for ks in range(14):
        mf = []
        for m in range(2):
            af = AB + (m * 14 + ks) * 4
            for nt in range(6):
                bf = BB + (ks & 1) * 24 + nt * 4
                acc = ACC + (m * 6 + nt) * 4
                c = "0" if ks == 0 else vr(acc)
                pre = "@lgwait:b%d_%d\n" % (ks, nt) if m == 0 else ""
                if nt < 4:
                    mf.append(pre + "v_mfma_f32_16x16x32_bf16 %s, %s, %s, %s" % (vr(acc), vr(bf), vr(af), c))
                else:
                    mf.append(pre + "v_mfma_f32_16x16x32_bf16 %s, %s, %s, %s" % (vr(acc), vr(af), vr(bf), c))
        c = ks // 2
        if ks % 2 == 0 and ks > 0:
            a("@vmwait:c%d" % c)
        side1 = a_loads(c + PD) if (ks % 2 == 0 and c + PD < 7) else []
        interleave(a, mf[:6], side1)
        side2 = ldb(ks + 1) if ks + 1 < 14 else []
        interleave(a, mf[6:], side2)
    stamp(a)
    a("v_lshlrev_b32 v10, 4, v4")
    for r in range(4):
        a("v_add_u32 v%d, %d, v10" % (11 + r, 4 * r))
    for m in range(2):
        for r in range(4):
            a("ds_bpermute_b32 v%d, v%d, v%d" % (16 + m * 4 + r, 11 + r, ST + m))
            a("ds_bpermute_b32 v%d, v%d, v%d" % (24 + m * 4 + r, 11 + r, ST + 2 + m))
    a("s_lshl_b32 s26, s37, 17")
    a("s_lshl_b32 s27, s12, 10")
    a("s_add_u32 s26, s26, s27")
    a("s_add_u32 s28, s26, 0x%x" % VF(L))
    a("s_add_u32 s27, s26, 0x%x" % KF(L))
    a("s_add_u32 s26, s26, 0x%x" % QF(L))
    for m in range(2):
        for qk in (1, 0):
            for p in range(2):
                nt = qk * 2 + p
                acc = ACC + (m * 6 + nt) * 4
                for r in range(0, 4, 2):
                    a("v_pk_fma_f32 %s, %s, %s, %s op_sel:[%d,0,0] op_sel_hi:[%d,1,1]" % (vr(acc + r, 2), vr(ST, 2), vr(CSB + nt * 4 + r, 2), vr(acc + r, 2), m, m))
                for r in range(0, 4, 2):
                    a("v_pk_mul_f32 %s, %s, %s op_sel:[%d,0] op_sel_hi:[%d,1]" % (vr(acc + r, 2), vr(ST + 2, 2), vr(acc + r, 2), m, m))
            d = 32 + (m * 2 + qk) * 4
            for p in range(2):
                acc = ACC + (m * 6 + qk * 2 + p) * 4
                a("v_cvt_pk_bf16_f32 v%d, v%d, v%d" % (d + 2 * p, acc, acc + 1))
                a("v_cvt_pk_bf16_f32 v%d, v%d, v%d" % (d + 2 * p + 1, acc + 2, acc + 3))
            a("buffer_store_dwordx4 %s, v5, s[52:55], s%d offen offset:%d" % (vr(d), 26 + qk, m * 1024) + SC)
    a("s_waitcnt lgkmcnt(0)")
    a("v_cmp_eq_u32 vcc, 12, v3")
    for dt in range(2):
        nt = 4 + dt
        for m in range(2):
            acc = ACC + (m * 6 + nt) * 4
            for r in range(4):
                a("v_fma_f32 v%d, v%d, v%d, v%d" % (acc + r, 16 + m * 4 + r, CSV + dt, acc + r))
            for r in range(0, 4, 2):
                a("v_pk_mul_f32 %s, %s, %s" % (vr(acc + r, 2), vr(24 + m * 4 + r, 2), vr(acc + r, 2)))
            if dt == 1:
                for r in range(4):
                    a("v_cndmask_b32 v%d, v%d, 1.0, vcc" % (acc + r, acc + r))
        d = 48 + dt * 4
        for m in range(2):
            acc = ACC + (m * 6 + nt) * 4
            a("v_cvt_pk_bf16_f32 v%d, v%d, v%d" % (d + 2 * m, acc, acc + 1))
            a("v_cvt_pk_bf16_f32 v%d, v%d, v%d" % (d + 2 * m + 1, acc + 2, acc + 3))
        a("buffer_store_dwordx4 %s, v5, s[52:55], s28 offen offset:%d" % (vr(d), dt * 1024) + SC)
    sync_signal(a, kv_off(L, 0))


def phase_attn(a, L):
    a.reset_counters()
    stamp(a)
    sfx = "_%d" % L
    a("s_cmp_eq_u32 s36, 0")
    a("s_cbranch_scc1 L_kv_done")
    a("s_cmp_lg_u32 s3, 0")
    a("s_cbranch_scc1 L_kv_done")
    a("s_cmp_ge_u32 s36, 2")
    a("s_cselect_b32 s45, 2048, 0")
    a("s_cselect_b32 s46, 2, 1")
    a("s_sub_u32 s41, s36, s46")
    a("s_lshl_b32 s41, s41, 4")
    a("s_add_u32 s41, s41, s37")
    a("s_lshl_b32 s41, s41, 7")
    a("s_add_u32 s41, s41, 0x%x" % (SYNC + 0x8000))
    a("v_and_b32 v255, 1, v0")
    a("v_mul_u32_u24 v255, s45, v255")
    a("s_mov_b32 s42, 0x40000")
    a.label("L_kv_loop")
    a("buffer_load_dword v254, v255, s[52:55], s41 offen sc0 sc1")
    a("s_waitcnt vmcnt(0)")
    a("v_readlane_b32 s43, v254, 0")
    a("v_readlane_b32 s46, v254, 1")
    a("s_min_u32 s43, s43, s46")
    a("s_cmp_ge_u32 s43, 1")
    a("s_cbranch_scc1 L_kv_done")
    a("s_sub_u32 s42, s42, 1")
    a("s_cmp_eq_u32 s42, 0")
    a("s_cbranch_scc1 L_kv_done")
    a("s_sleep 1")
    a("s_branch L_kv_loop")
    a.label("L_kv_done")
    a("s_barrier")
    stamp(a)
    a("s_lshl_b32 s11, s36, 2")
    a("s_add_u32 s11, s11, s3")
    a("s_lshl_b32 s12, s37, 17")
    a("s_lshl_b32 s13, s11, 11")
    a("s_add_u32 s13, s12, s13")
    a("s_add_u32 s14, s13, 0x%x" % QF(L))
    a("s_add_u32 s15, s13, 0x%x" % (KF(L) - 16 * 1024))
    a("s_add_u32 s16, s12, 0x%x" % VF(L))
    a("s_sub_i32 s18, s11, 8")
    QB = 8
    for t in range(2):
        a("@vm:q")
        a("buffer_load_dwordx4 %s, v5, s[52:55], s14 offen offset:%d" % (vr(QB + 4 * t), t * 1024))
    a("s_lshl_b32 s10, s11, 1")
    a("s_sub_i32 s10, s10, 16")
    a("s_add_u32 s15, s12, 0x%x" % KF(L))
    for kt in range(18):
        a("s_add_i32 s19, s10, %d" % kt)
        a("s_max_i32 s19, s19, 0")
        a("s_lshl_b32 s19, s19, 10")
        a("s_add_u32 s19, s19, s15")
        a("@vm:k%d" % kt)
        a("buffer_load_dwordx4 %s, v5, s[52:55], s19 offen" % ar(kt * 4))
    a("v_lshlrev_b32 v6, 2, v4")
    for r in range(4):
        a("v_add_u32 v7, %d, v6" % r)
        a("v_cmp_ge_u32 s[%d:%d], v3, v7" % (20 + 2 * r, 21 + 2 * r))
    a("v_mov_b32 v6, 0xff800000")
    SB = 16

    def S(t, kt):
        return SB + (t * 18 + kt) * 4
    vloads = []
    for s in range(9):
        pre = ["s_add_i32 s19, s18, %d" % s, "s_max_i32 s19, s19, 0", "s_lshl_b32 s19, s19, 11", "s_add_u32 s19, s19, s16"]
        for dt in range(2):
            vloads.append((pre if dt == 0 else []) + ["@vm:v", "buffer_load_dwordx4 %s, v5, s[52:55], s19 offen offset:%d" % (ar(72 + (s * 2 + dt) * 4), dt * 1024)])
    mf = []
    for kt in range(18):
        first = True
        for t in range(2):
            if (t == 0 and kt == 17) or (t == 1 and kt == 0):
                continue
            pre = "@vmwait:k%d\n" % kt if first else ""
            first = False
            mf.append(pre + "v_mfma_f32_16x16x32_bf16 %s, %s, %s, 0" % (vr(S(t, kt)), ar(kt * 4), vr(QB + 4 * t)))
    interleave(a, mf, vloads)
    stamp(a)
    a("s_nop 7")
    a("s_lshl_b32 s17, s11, 1")
    a("s_sub_i32 s17, 16, s17")
    a("s_cmp_le_i32 s17, 0")
    a("s_cbranch_scc1 L_attn_noneg" + sfx)
    for kt in range(16):
        l = a.newlabel("attn_neg")
        a("s_cmp_le_i32 s17, %d" % kt)
        a("s_cbranch_scc1 %s" % l)
        for t in range(2):
            if (t == 1 and kt == 0):
                continue
            for r in range(4):
                a("v_mov_b32 v%d, v6" % (S(t, kt) + r))
        a.label(l)
    a.label("L_attn_noneg" + sfx)
    for t in range(2):
        for r in range(4):
            a("v_cndmask_b32 v%d, v%d, v6, s[%d:%d]" % (S(t, t) + r, S(t, t) + r, 20 + 2 * r, 21 + 2 * r))
            a("v_cndmask_b32 v%d, v6, v%d, s[%d:%d]" % (S(t, t + 16) + r, S(t, t + 16) + r, 20 + 2 * r, 21 + 2 * r))
    MX = 176
    regs = [[S(t, kt) + r for kt in range(t, t + 17) for r in range(4)] for t in range(2)]
    for t in range(2):
        a("v_max_f32 v%d, v%d, v%d" % (MX + t, regs[t][0], regs[t][1]))
    for k in range(2, 68, 2):
        for t in range(2):
            a("v_max3_f32 v%d, v%d, v%d, v%d" % (MX + t, MX + t, regs[t][k], regs[t][k + 1]))
    reduce_g_multi(a, [MX, MX + 1], [178, 179], "v_max_f32")
    c = (28 ** -0.5) * math.log2(math.e)
    chex = struct.unpack("<I", struct.pack("<f", c))[0]
    a("s_mov_b32 s28, 0x%08x" % chex)
    a("v_mov_b32 v188, s28")
    a("v_mov_b32 v189, s28")
    for t in range(2):
        a("v_mul_f32 v%d, -v188, v%d" % (180 + 2 * t, MX + t))
        a("v_mul_f32 v%d, -v188, v%d" % (181 + 2 * t, MX + t))
    for t in range(2):
        for kt in range(t, t + 17):
            for r in range(0, 4, 2):
                a("v_pk_fma_f32 %s, %s, v[188:189], %s" % (vr(S(t, kt) + r, 2), vr(S(t, kt) + r, 2), vr(180 + 2 * t, 2)))
            for r in range(4):
                a("v_exp_f32 v%d, v%d" % (S(t, kt) + r, S(t, kt) + r))
    a("s_nop 0")
    for t in range(2):
        for s in range(9):
            d = S(t, 2 * s)
            s0 = S(t, 2 * s)
            s1 = S(t, 2 * s + 1)
            if t == 1 and s == 0:
                a("v_cvt_pk_bf16_f32 v%d, v%d, v%d" % (d + 2, s1, s1 + 1))
                a("v_cvt_pk_bf16_f32 v%d, v%d, v%d" % (d + 3, s1 + 2, s1 + 3))
                a("v_mov_b32 v%d, 0" % d)
                a("v_mov_b32 v%d, 0" % (d + 1))
            elif t == 0 and s == 8:
                a("v_cvt_pk_bf16_f32 v%d, v%d, v%d" % (d, s0, s0 + 1))
                a("v_cvt_pk_bf16_f32 v%d, v%d, v%d" % (d + 1, s0 + 2, s0 + 3))
                a("v_mov_b32 v%d, 0" % (d + 2))
                a("v_mov_b32 v%d, 0" % (d + 3))
            else:
                a("v_cvt_pk_bf16_f32 v%d, v%d, v%d" % (d, s0, s0 + 1))
                a("v_cvt_pk_bf16_f32 v%d, v%d, v%d" % (d + 1, s0 + 2, s0 + 3))
                a("v_cvt_pk_bf16_f32 v%d, v%d, v%d" % (d + 2, s1, s1 + 1))
                a("v_cvt_pk_bf16_f32 v%d, v%d, v%d" % (d + 3, s1 + 2, s1 + 3))
    stamp(a)
    a("s_waitcnt vmcnt(0)")
    a("s_nop 1")
    OB = 160
    for s in range(9):
        for t in range(2):
            for dt in range(2):
                o = OB + (t * 2 + dt) * 4
                a("v_mfma_f32_16x16x32_bf16 %s, %s, %s, %s" % (vr(o), ar(72 + (s * 2 + dt) * 4), vr(S(t, 2 * s)), "0" if s == 0 else vr(o)))
    a("v_add_u32 v7, 48, v3")
    a("v_lshlrev_b32 v7, 2, v7")
    a("s_nop 7")
    for t in range(2):
        a("ds_bpermute_b32 v%d, v7, v%d" % (MX + t, OB + (t * 2 + 1) * 4))
    a("s_waitcnt lgkmcnt(0)")
    for t in range(2):
        a("v_rcp_f32 v%d, v%d" % (MX + t, MX + t))
    a("s_nop 0")
    a("s_lshl_b32 s12, s11, 15")
    a("s_lshl_b32 s13, s37, 10")
    a("s_add_u32 s12, s12, s13")
    a("s_add_u32 s12, s12, 0x%x" % OF(L))
    a("s_add_u32 s13, s12, 16384")
    for t in range(2):
        for dt in range(2):
            o = OB + (t * 2 + dt) * 4
            for r in range(4):
                a("v_mul_f32 v%d, v%d, v%d" % (o + r, MX + t, o + r))
        d = 180 + t * 4
        for dt in range(2):
            o = OB + (t * 2 + dt) * 4
            a("v_cvt_pk_bf16_f32 v%d, v%d, v%d" % (d + 2 * dt, o, o + 1))
            a("v_cvt_pk_bf16_f32 v%d, v%d, v%d" % (d + 2 * dt + 1, o + 2, o + 3))
        a("buffer_store_dwordx4 %s, v5, s[52:55], s%d offen" % (vr(d), 12 + t) + SC)
    sync_signal(a, bar_off(L, 0))


def phase_gemm_res(a, L, KS, AOFF, WOFF, xin, xout, final, wait_k, wait_n, sig_k):
    a.reset_counters()
    stamp(a)
    a("s_cmp_ge_u32 s37, 7")
    a("s_cselect_b32 s10, 1, 0")
    a("s_mul_i32 s11, s10, 7")
    a("s_sub_u32 s11, s37, s11")
    a("s_lshl_b32 s8, s36, 1")
    a("s_add_u32 s10, s10, s8")
    KW = KS // 4
    a("s_mul_i32 s12, s10, %d" % (4 * KS * 1024))
    a("s_mul_i32 s13, s3, %d" % (KW * 1024))
    a("s_add_u32 s12, s12, s13")
    a("s_add_u32 s12, s12, 0x%x" % AOFF)
    for m in range(1, 4):
        a("s_add_u32 s%d, s12, %d" % (12 + m, m * KS * 1024))
    a("s_mul_i32 s16, s11, %d" % (4 * KS * 1024))
    a("s_mul_i32 s20, s3, %d" % (KW * 1024))
    a("s_add_u32 s16, s16, s20")
    a("s_add_u32 s16, s16, 0x%x" % WOFF)
    for n in range(1, 4):
        a("s_add_u32 s%d, s16, %d" % (16 + n, n * KS * 1024))
    a("s_lshl_b32 s20, s10, 2")
    a("s_add_u32 s20, s20, s3")
    a("s_mul_i32 s21, s20, %d" % (14 * 1024))
    a("s_lshl_b32 s22, s11, 11")
    a("s_add_u32 s21, s21, s22")
    a("s_add_u32 s24, s21, 0x%x" % xout)
    a("s_add_u32 s21, s21, 0x%x" % xin)
    RX = 8
    DEPTH = min(KW, 7)
    ACC = 16

    def slot(ks):
        return (ks % DEPTH) * 32

    def wl(ks):
        g = []
        for m in range(4):
            g.append(["@vm:k%d" % ks, "buffer_load_dwordx4 %s, v5, s[4:7], s%d offen offset:%d" % (ar(slot(ks) + 16 + m * 4), 16 + m, (ks % 4) * 1024)])
        if ks % 4 == 3:
            g[-1] = g[-1] + ["s_add_u32 s%d, s%d, 4096" % (16 + k, 16 + k) for k in range(4)]
        return g

    def al(ks):
        g = []
        for m in range(4):
            g.append(["@vm:k%d" % ks, "buffer_load_dwordx4 %s, v5, s[52:55], s%d offen offset:%d" % (ar(slot(ks) + m * 4), 12 + m, (ks % 4) * 1024)])
        if ks % 4 == 3:
            g[-1] = g[-1] + ["s_add_u32 s%d, s%d, 4096" % (12 + k, 12 + k) for k in range(4)]
        return g
    for ks in range(DEPTH):
        for g in wl(ks):
            for l in g:
                a(l)
    a("@vm:rx")
    a("buffer_load_dwordx4 %s, v5, s[52:55], s21 offen" % vr(RX))
    a("@vm:rx")
    a("buffer_load_dwordx4 %s, v5, s[52:55], s21 offen offset:1024" % vr(RX + 4))
    sync_wait(a, bar_off(L, wait_k), wait_n)
    stamp(a)
    PD = min(KW, 4)
    for ks in range(PD):
        for g in al(ks):
            for l in g:
                a(l)
    na = PD
    nw = DEPTH
    for ks in range(KW):
        if ks == 1:
            stamp(a)
        mf = []
        for m in range(4):
            for n in range(4):
                acc = ACC + (m * 4 + n) * 4
                mf.append("v_mfma_f32_16x16x32_bf16 %s, %s, %s, %s" % (vr(acc), ar(slot(ks) + 16 + n * 4), ar(slot(ks) + m * 4), "0" if ks == 0 else vr(acc)))
        a("@vmwait:k%d" % ks)
        side = []
        while na < KW and na <= ks + DEPTH - 1 and len(side) < 8:
            side += al(na)
            na += 1
        while nw < KW and nw <= ks + DEPTH - 1:
            side += wl(nw)
            nw += 1
        interleave(a, mf, side)
    stamp(a)
    a("s_nop 7")
    a("s_lshl_b32 s22, s3, 14")
    a("v_add_u32 v6, s22, v5")
    for m in range(4):
        for n in range(4):
            a("ds_write_b128 v6, %s offset:%d" % (vr(ACC + (m * 4 + n) * 4), (m * 4 + n) * 1024))
    a("s_waitcnt lgkmcnt(0)")
    a("s_barrier")
    a("s_lshl_b32 s22, s3, 12")
    a("v_add_u32 v6, s22, v5")
    RB = 80
    for w in range(4):
        for n in range(4):
            a("ds_read_b128 %s, v6 offset:%d" % (vr(RB + (w * 4 + n) * 4), w * 16384 + n * 1024))
    a("s_waitcnt lgkmcnt(8)")
    for k in range(0, 16, 2):
        a("v_pk_add_f32 %s, %s, %s" % (vr(RB + k, 2), vr(RB + k, 2), vr(RB + 16 + k, 2)))
    a("s_waitcnt lgkmcnt(0)")
    for k in range(0, 16, 2):
        a("v_pk_add_f32 %s, %s, %s" % (vr(RB + 32 + k, 2), vr(RB + 32 + k, 2), vr(RB + 48 + k, 2)))
    for k in range(0, 16, 2):
        a("v_pk_add_f32 %s, %s, %s" % (vr(RB + k, 2), vr(RB + k, 2), vr(RB + 32 + k, 2)))
    T = 16
    for q in range(8):
        a("v_cvt_pk_bf16_f32 v%d, v%d, v%d" % (T + q, RB + 2 * q, RB + 2 * q + 1))
    for q in range(8):
        a("v_lshlrev_b32 v%d, 16, v%d" % (32 + 2 * q, T + q))
        a("v_and_b32 v%d, 0xffff0000, v%d" % (33 + 2 * q, T + q))
        a("v_lshlrev_b32 v%d, 16, v%d" % (48 + 2 * q, RX + q))
        a("v_and_b32 v%d, 0xffff0000, v%d" % (49 + 2 * q, RX + q))
    for q in range(8):
        a("v_pk_add_f32 %s, %s, %s" % (vr(32 + 2 * q, 2), vr(32 + 2 * q, 2), vr(48 + 2 * q, 2)))
    for q in range(8):
        a("v_cvt_pk_bf16_f32 v%d, v%d, v%d" % (24 + q, 32 + 2 * q, 33 + 2 * q))
    if final:
        a("s_cmp_eq_u32 s51, 1")
        a("s_cbranch_scc1 L_final_store")
    if True:
        a("buffer_store_dwordx4 %s, v5, s[52:55], s24 offen" % vr(24) + SC)
        a("buffer_store_dwordx4 %s, v5, s[52:55], s24 offen offset:1024" % vr(28) + SC)
        a("v_mov_b32 v64, 0")
        a("v_mov_b32 v65, 0")
        a("v_mov_b32 v66, 0")
        a("v_mov_b32 v67, 0")
        for q in range(0, 8, 2):
            a("v_dot2c_f32_bf16 v64, s40, v%d" % (24 + q))
            a("v_dot2c_f32_bf16 v65, v%d, v%d" % (24 + q, 24 + q))
            a("v_dot2c_f32_bf16 v66, s40, v%d" % (25 + q))
            a("v_dot2c_f32_bf16 v67, v%d, v%d" % (25 + q, 25 + q))
        a("s_lshl_b32 s22, s20, 7")
        a("s_lshl_b32 s23, s11, 14")
        a("s_add_u32 s22, s22, s23")
        a("s_add_u32 s22, s22, 0x%x" % (STP(2) if final else STP(1)))
        a("v_lshlrev_b32 v6, 3, v3")
        a("v_pk_add_f32 v[64:65], v[64:65], v[66:67]")
        reduce_g_multi(a, [64, 65], [66, 67])
        a("buffer_store_dwordx2 v[64:65], v6, s[52:55], s22 offen" + SC)
        sync_signal(a, bar_off(1 if final else 0, sig_k))
    if final:
        a("s_branch L_final_done")
        a.label("L_final_store")
        a("s_lshl_b32 s22, s20, 4")
        a("v_add_u32 v6, s22, v3")
        a("v_mul_u32_u24 v6, 896, v6")
        a("v_lshlrev_b32 v7, 3, v4")
        a("v_add_u32 v6, v6, v7")
        a("s_lshl_b32 s22, s11, 7")
        for p in range(2):
            a("buffer_store_dwordx2 %s, v6, s[32:35], s22 offen offset:%d" % (vr(24 + p * 4, 2), p * 64))
            a("buffer_store_dwordx2 %s, v6, s[32:35], s22 offen offset:%d" % (vr(26 + p * 4, 2), p * 64 + 32))
        a.label("L_final_done")


def phase_gateup(a, L):
    a.reset_counters()
    stamp(a)
    xin = XF(2 * L + 1)
    a("s_lshl_b32 s12, s36, 3")
    a("s_lshl_b32 s13, s3, 1")
    a("s_add_u32 s12, s12, s13")
    a("s_mul_i32 s14, s12, %d" % (14 * 1024))
    a("s_add_u32 s14, s14, 0x%x" % xin)
    a("s_add_u32 s15, s14, %d" % (14 * 1024))
    a("s_lshl_b32 s16, s3, 11")
    a("s_lshl_b32 s17, s37, 2")
    a("s_add_u32 s17, s17, s3")
    a("s_mul_i32 s18, s17, %d" % (56 * 1024))
    a("s_add_u32 s18, s18, 0x%x" % WGUF)
    a("v_add_u32 v7, 0x10000, v5")
    CSB = 200
    ST = 192
    SL = 248
    a("s_lshl_b32 s23, s17, 7")
    a("s_add_u32 s24, s23, 0x%x" % CS_U)
    a("s_add_u32 s23, s23, 0x%x" % CS_G)
    a("v_lshlrev_b32 v6, 4, v4")
    for q in range(4):
        cb_ = CSB if q == 0 else 64 + (q - 1) * 16
        for mat in range(2):
            for p in range(2):
                a("@vm:cs")
                a("buffer_load_dwordx4 %s, v6, s[4:7], s%d offen offset:%d" % (vr(cb_ + (mat * 2 + p) * 4), 23 + mat, p * 64))
        a("s_add_u32 s23, s23, 0x8000")
        a("s_add_u32 s24, s24, 0x8000")

    def al(ks):
        g = []
        for m in range(2):
            g.append(["s_add_u32 s19, s16, %d" % ((ks * 8 + m) * 1024), "s_mov_b32 m0, s19", "s_add_u32 s25, s%d, %d" % (14 + m, ks * 1024),
                      "@vm:k%d" % ks, "buffer_load_dwordx4 v5, s[52:55], s25 offen" + " lds"])
        return g

    def wl(ks):
        g = []
        for f in range(4):
            g.append(["@vm:k%d" % ks, "buffer_load_dwordx4 %s, v5, s[4:7], s18 offen offset:%d" % (ar((ks * 4 + f) * 4), f * 1024)])
        g[-1] = g[-1] + ["s_add_u32 s18, s18, 4096"]
        return g
    PW = 6
    for ks in range(PW):
        for g in wl(ks):
            for l in g:
                a(l)
    sync_wait(a, bar_off(L, 1), 14)
    stamp(a)
    stats_load(a, 12, SL, 40, "st", STP(2 * L + 1))
    PD = 6
    for ks in range(PD):
        for g in al(ks):
            for l in g:
                a(l)
    a("@vmwait:st")
    stats_finish(a, SL, ST, [42, 43, 44, 45], 38, 39)
    for q in range(3):
        for k in range(0, 16, 2):
            a("v_pk_add_f32 %s, %s, %s" % (vr(CSB + k, 2), vr(CSB + k, 2), vr(64 + q * 16 + k, 2)))
    a("s_lshl_b32 s23, s3, 8")
    a("s_add_u32 s23, s23, 114688")
    a("v_lshlrev_b32 v6, 3, v3")
    a("v_add_u32 v46, s23, v6")
    a("v_mov_b32 v48, v%d" % ST)
    a("v_mov_b32 v49, v%d" % (ST + 2))
    a("v_mov_b32 v50, v%d" % (ST + 1))
    a("v_mov_b32 v51, v%d" % (ST + 3))
    a("ds_write_b64 v46, v[48:49]")
    a("ds_write_b64 v46, v[50:51] offset:128")
    a("s_waitcnt lgkmcnt(0)")
    a("@vmwait:k0")
    a("s_barrier")
    stamp(a)
    ACC = 64
    ABUF = [8, 216]

    def lda(ks):
        g = []
        for mt in range(8):
            off = (ks * 8 + mt) * 1024
            if off < 0x10000:
                g.append(["@lg:a%d_%d" % (ks, mt), "ds_read_b128 %s, v5 offset:%d" % (vr(ABUF[ks & 1] + mt * 4), off)])
            else:
                g.append(["@lg:a%d_%d" % (ks, mt), "ds_read_b128 %s, v7 offset:%d" % (vr(ABUF[ks & 1] + mt * 4), off - 0x10000)])
        return g
    for g in lda(0):
        for l in g:
            a(l)
    for ks in range(14):
        ab = ABUF[ks & 1]
        mf = []
        for mt in range(8):
            for f in range(4):
                acc = ACC + (mt * 4 + f) * 4
                pre = "@lgwait:a%d_%d\n" % (ks, mt) if f == 0 else ""
                mf.append(pre + "v_mfma_f32_16x16x32_bf16 %s, %s, %s, %s" % (vr(acc), ar((ks * 4 + f) * 4), vr(ab + mt * 4), "0" if ks == 0 else vr(acc)))
        side1 = (al(ks + PD) if ks + PD < 14 else []) + (wl(ks + PW) if ks + PW < 14 else [])
        interleave(a, mf[:16], side1)
        if ks + 1 < 14:
            a("@vmwait:k%d" % (ks + 1))
            a("s_barrier")
        side2 = lda(ks + 1) if ks + 1 < 14 else []
        interleave(a, mf[16:], side2)
    stamp(a)
    a("v_add_u32 v8, 114688, v6")
    for mt in range(8):
        a("ds_read_b64 %s, v8 offset:%d" % (vr(16 + mt * 2, 2), mt * 128))
    a("s_lshl_b32 s12, s36, 3")
    a("s_mul_i32 s12, s12, %d" % (56 * 1024))
    a("s_lshl_b32 s13, s17, 10")
    a("s_add_u32 s12, s12, s13")
    a("s_add_u32 s12, s12, 0x%x" % HF(L))
    a("s_waitcnt lgkmcnt(0)")
    for mt in range(8):
        nm = 16 + mt * 2
        rs = nm + 1
        a("v_mul_f32 v%d, v%d, v%d" % (rs, rs, rs))
        for p in range(2):
            g = ACC + (mt * 4 + p) * 4
            u = ACC + (mt * 4 + 2 + p) * 4
            for r in range(0, 4, 2):
                a("v_pk_fma_f32 %s, %s, %s, %s op_sel_hi:[0,1,1]" % (vr(g + r, 2), vr(nm, 2), vr(CSB + p * 4 + r, 2), vr(g + r, 2)))
                a("v_pk_fma_f32 %s, %s, %s, %s op_sel_hi:[0,1,1]" % (vr(u + r, 2), vr(nm, 2), vr(CSB + 8 + p * 4 + r, 2), vr(u + r, 2)))
        for p in range(2):
            g = ACC + (mt * 4 + p) * 4
            u = ACC + (mt * 4 + 2 + p) * 4
            for r in range(0, 4, 2):
                a("v_pk_mul_f32 %s, %s, %s" % (vr(g + r, 2), vr(g + r, 2), vr(u + r, 2)))
        for p in range(2):
            g = ACC + (mt * 4 + p) * 4
            for r in range(0, 4, 2):
                a("v_pk_mul_f32 %s, %s, %s op_sel:[0,1] op_sel_hi:[1,1]" % (vr(g + r, 2), vr(g + r, 2), vr(nm, 2)))
        d = 32 + (mt & 3) * 4
        for p in range(2):
            g = ACC + (mt * 4 + p) * 4
            a("v_cvt_pk_bf16_f32 v%d, v%d, v%d" % (d + 2 * p, g, g + 1))
            a("v_cvt_pk_bf16_f32 v%d, v%d, v%d" % (d + 2 * p + 1, g + 2, g + 3))
        a("buffer_store_dwordx4 %s, v5, s[52:55], s12 offen" % vr(d) + SC)
        a("s_add_u32 s12, s12, %d" % (56 * 1024))
    sync_signal(a, bar_off(L, 2))


def gen_mega(a):
    name = "mega_kernel"
    kernel_begin(a, name)
    a("s_cmp_ge_u32 s2, 256")
    a("s_cbranch_scc1 L_mega_end")
    ws_srd(a, 4)
    a("s_load_dwordx2 s[32:33], s[0:1], 56")
    a("s_mov_b32 s34, %d" % OUT_BYTES)
    a("s_mov_b32 s35, 0x20000")
    lane_setup(a)
    a("s_and_b32 s8, s2, 7")
    a("s_lshr_b32 s9, s2, 3")
    a("s_lshl_b32 s36, s8, 1")
    a("s_lshr_b32 s10, s9, 4")
    a("s_add_u32 s36, s36, s10")
    a("s_and_b32 s37, s9, 15")
    a("s_mov_b32 s38, %s" % INV448)
    a("s_mov_b32 s39, %s" % EPS)
    a("s_mov_b32 s40, %s" % ONES_BF)
    a("s_waitcnt lgkmcnt(0)")
    a("s_add_u32 s52, s4, 0x%x" % LBASE)
    a("s_addc_u32 s53, s5, 0")
    a("s_mov_b32 s54, 0x%x" % (2 * LSTR))
    a("s_mov_b32 s55, 0x20000")
    a("s_mov_b32 s51, 0")
    a.label("L_layer")
    L = 0
    phase_qkv(a, L)
    stamp_flush(a, 4)
    phase_attn(a, L)
    stamp_flush(a, 4)
    a("s_cmp_ge_u32 s37, 14")
    a("s_cbranch_scc1 L_mega_skip")
    phase_gemm_res(a, L, 16, OF(L), WOF, XF(0), XF(1), False, 0, 16, 1)
    stamp_flush(a, 4)
    phase_gateup(a, L)
    stamp_flush(a, 4)
    phase_gemm_res(a, L, 56, HF(L), WDF, XF(1), XF(2), True, 2, 14, 3)
    stamp_flush(a, 4)
    a.label("L_mega_skip")
    a("s_add_u32 s52, s52, 0x%x" % LSTR)
    a("s_addc_u32 s53, s53, 0")
    a("s_add_u32 s51, s51, 1")
    a("s_cmp_lt_u32 s51, 2")
    a("s_cbranch_scc1 L_layer")
    a.label("L_mega_end")
    a("s_endpgm")
    kernel_desc(name, 512, 60, 256)


def main():
    global STAMP
    if len(sys.argv) > 2 and sys.argv[2] == "stamp":
        STAMP = True
    a = Asm()
    gen_prep(a)
    gen_mega(a)
    hdr = open("cdna_kernels/%s.s.ref" % NAME).read().split("\n")
    head = [l for l in hdr if l.startswith(";") and "@launch" not in l and "Override launch" not in l and "grid=ceil" not in l]
    launches = [
        ("prep_kernel", 368, 256, PREP_LDS),
        ("mega_kernel", 256, 256, 114688 + 1024),
    ]
    out = "\n".join(head) + "\n"
    for (k, g, b, l) in launches:
        out += "; @launch kernel=%s grid=(%d,1,1) block=(%d,1,1) lds=%d\n" % (k, g, b, l)
    out += '.amdgcn_target "amdgcn-amd-amdhsa--gfx950"\n.text\n'
    out += a.text()
    out += '.section .rodata,"a"\n'
    for kd in KDS:
        out += ".p2align 6\n" + kd + "\n"
    path = sys.argv[1] if len(sys.argv) > 1 else "cdna_kernels/%s.s" % NAME
    open(path, "w").write(out)
    print("wrote", path, len(out))


if __name__ == "__main__":
    main()
```
